```python
import torch

def _softmax(x, axis=-1):
    return torch.softmax(x, dim=axis)
def _gelu(x):
    return torch.nn.functional.gelu(x, approximate="tanh")
def _silu(x):
    return torch.nn.functional.silu(x)
def _sigmoid(x):
    return torch.sigmoid(x)
def _layernorm(x, axis=-1, eps=1e-5):
    m = x.mean(dim=axis, keepdim=True)
    v = x.var(dim=axis, keepdim=True, unbiased=False)
    return (x - m) / torch.sqrt(v + eps)
def _scatter_add(tgt, idx, src, axis=0):
    return tgt.clone().index_add_(axis, idx, src)
def _segment_sum(src, seg, n):
    out = torch.zeros((n,) + src.shape[1:], dtype=src.dtype)
    return out.index_add_(0, seg, src)
def _pad(x, pw):
    flat = tuple(v for pair in reversed(pw) for v in pair)
    return torch.nn.functional.pad(x, flat)

kernel_name = 'sequential_preLN__grouped_kv_mqa__glu_gated_geglu__prompt'

def setup_inputs():

    _w = (lambda a: (lambda t: t.to(torch.bfloat16) if t.is_floating_point() else t)(torch.as_tensor(a)))
    def _A_setup():
        B, S, D, H = 1, 2048, 512, 32
        Dh = D // H
        return {
            "x": _w((lambda *s: torch.randn(*s, dtype=torch.bfloat16) * 0.05)(B, S, D)),
            "wq": _w((lambda *s: torch.randn(*s, dtype=torch.bfloat16) * 0.05)(D, H * Dh)),
            "wk": _w((lambda *s: torch.randn(*s, dtype=torch.bfloat16) * 0.05)(D, Dh)),
            "wv": _w((lambda *s: torch.randn(*s, dtype=torch.bfloat16) * 0.05)(D, Dh)),
            "wo": _w((lambda *s: torch.randn(*s, dtype=torch.bfloat16) * 0.05)(H * Dh, D)),
        }
    _A_in = _A_setup()

    def _B_setup():
        B, S, Dm, Df = 1, 2048, 512, 1792
        return {
            "x": _w((lambda *s: torch.randn(*s, dtype=torch.bfloat16) * 0.05)(B, S, Dm)),
            "w_gate": _w((lambda *s: torch.randn(*s, dtype=torch.bfloat16) * 0.4)(Dm, Df) * (Dm ** -0.5)),
            "w_up": _w((lambda *s: torch.randn(*s, dtype=torch.bfloat16) * 0.4)(Dm, Df) * (Dm ** -0.5)),
            "w_down": _w((lambda *s: torch.randn(*s, dtype=torch.bfloat16) * 0.4)(Df, Dm) * (Df ** -0.5)),
        }
    _B_in = _B_setup()

    return {
        "A_x": _A_in["x"],
        "A_wq": _A_in["wq"],
        "A_wk": _A_in["wk"],
        "A_wv": _A_in["wv"],
        "A_wo": _A_in["wo"],
        "B_x": _B_in["x"],
        "B_w_gate": _B_in["w_gate"],
        "B_w_up": _B_in["w_up"],
        "B_w_down": _B_in["w_down"],
    }

def reference(A_x, A_wq, A_wk, A_wv, A_wo, B_x, B_w_gate, B_w_up, B_w_down):
    def _A_ref(x, wq, wk, wv, wo):
        B, S, D = x.shape
        H = 32
        Dh = D // H
        q = (lambda x, *d: x.permute(*d))((x @ wq).reshape(B, S, H, Dh), 0, 2, 1, 3)
        k = x @ wk
        v = x @ wv
        scores = torch.einsum("bhqd,bkd->bhqk", q, k) * (Dh ** -0.5)
        p = _softmax(scores, axis=-1)
        o = torch.einsum("bhqk,bkd->bhqd", p, v)
        return (lambda x, *d: x.permute(*d))(o, 0, 2, 1, 3).reshape(B, S, H * Dh) @ wo

    def _B_ref(x, w_gate, w_up, w_down):
        g = torch.einsum("bsd,df->bsf", x, w_gate)
        u = torch.einsum("bsd,df->bsf", x, w_up)
        h = _gelu(g) * u
        return torch.einsum("bsf,fd->bsd", h, w_down)

    x = A_x
    h = x + _A_ref(_layernorm(x, axis=-1), A_wq, A_wk, A_wv, A_wo)
    h2 = h + _B_ref(_layernorm(h, axis=-1), B_w_gate, B_w_up, B_w_down)
    return h2
```

```python
import math, struct

class Asm:
    def __init__(self):
        self.lines = []
    def __call__(self, s):
        for l in s.strip("\n").split("\n"):
            self.lines.append("    " + l.strip())
    def label(self, l):
        self.lines.append(l + ":")
    def comment(self, c):
        self.lines.append("    ; " + c)
    def text(self):
        return "\n".join(self.lines) + "\n"

def f32bits(x):
    return struct.unpack("<I", struct.pack("<f", x))[0]

def vr(a, n=None):
    if n is None or n == 1:
        return f"v{a}"
    return f"v[{a}:{a+n-1}]"

def sr(a, n=2):
    return f"s[{a}:{a+n-1}]"

WS_Q   = 0x0000000
WS_KF  = 0x0200000
WS_VF  = 0x0210000
WS_WOT = 0x0220000
WS_H   = 0x0300000
WS_HN  = 0x0500000
WS_HH  = 0x0700000

QSCALE = 0.25 * math.log2(math.e)

def kernel_header(a, name):
    a.lines.append(f".globl {name}")
    a.lines.append(".p2align 8")
    a.lines.append(f".type {name},@function")
    a.lines.append(f"{name}:")

def kernel_desc(name, nvgpr, nsgpr=102):
    acc = (nvgpr + 3) // 4 * 4
    return f""".amdhsa_kernel {name}
  .amdhsa_next_free_vgpr {nvgpr}
  .amdhsa_next_free_sgpr {nsgpr}
  .amdhsa_accum_offset {acc}
  .amdhsa_group_segment_fixed_size 0
  .amdhsa_kernarg_size 96
  .amdhsa_user_sgpr_count 2
  .amdhsa_user_sgpr_kernarg_segment_ptr 1
  .amdhsa_system_sgpr_workgroup_id_x 1
  .amdhsa_float_denorm_mode_32 3
.end_amdhsa_kernel
"""

def make_srd(a, d, base, nbytes, add=0):
    if add:
        a(f"s_add_u32 s{d}, s{base}, {add}")
        a(f"s_addc_u32 s{d+1}, s{base+1}, 0")
    else:
        a(f"s_mov_b32 s{d}, s{base}")
        a(f"s_mov_b32 s{d+1}, s{base+1}")
    a(f"s_mov_b32 s{d+2}, {nbytes}")
    a(f"s_mov_b32 s{d+3}, 0x00020000")

import os
STAMPS = os.environ.get("STAMPS", "") != ""
_stamp_state = {"n": 0}
def stamp_init(a):
    if not STAMPS: return
    _stamp_state["n"] = 0
    a("s_load_dwordx2 s[92:93], s[0:1], 80")
    a("s_memtime s[90:91]")
    a("s_memrealtime s[96:97]")
    a("s_waitcnt lgkmcnt(0)")
def stamp(a, wavesreg="s18"):
    if not STAMPS: return
    n = _stamp_state["n"]; _stamp_state["n"] += 1
    a("s_memtime s[94:95]")
    a("s_memrealtime s[98:99]")
    a("s_waitcnt lgkmcnt(0)")
    a("s_sub_u32 s94, s94, s90")
    a("s_sub_u32 s98, s98, s96")
    a(f"v_mov_b32 v254, s94")
    a(f"v_mov_b32 v253, s98")
    a(f"v_mov_b32 v255, {n*4}")
    a(f"s_or_b32 s95, s2, {wavesreg}")
    a(f"s_cmp_lg_u32 s95, 0")
    a(f"s_cbranch_scc1 STAMP_SKIP_{id(a)}_{len(a.lines)}")
    lab = f"STAMP_SKIP_{id(a)}_{len(a.lines)-1}"
    a(f"global_store_dword v255, v254, s[92:93]")
    a(f"global_store_dword v255, v253, s[92:93] offset:64")
    a.label(lab)
```

```python
from common import *

K1_LDS_XN = 0
K1_LDS_W  = 66560
K1_LDS_KV = 66560 + 65536
K1_LDS = K1_LDS_KV + 16384

def gen_k1(a):
    name = "k1_qkv_kernel"
    kernel_header(a, name)
    a(f"""
    s_cmp_ge_u32 s2, 256
    s_cbranch_scc1 K1_END
    s_load_dwordx8 s[4:11], s[0:1], 0
    s_load_dwordx2 s[12:13], s[0:1], 32
    s_load_dwordx2 s[14:15], s[0:1], 88
    v_lshrrev_b32 v1, 6, v0
    v_and_b32 v0, 63, v0
    s_and_b32 s16, s2, 7
    s_lshl_b32 s16, s16, 2
    s_lshr_b32 s17, s2, 6
    s_add_u32 s16, s16, s17
    s_lshr_b32 s17, s2, 3
    s_and_b32 s17, s17, 7            ; cb
    v_readfirstlane_b32 s18, v1
    s_waitcnt lgkmcnt(0)
    """)
    make_srd(a, 20, 6, 512*1024)
    a(f"""
    s_cmp_lt_u32 s17, 4
    s_cselect_b32 s24, s8, s10
    s_cselect_b32 s25, s9, s11
    s_mov_b32 s26, 16384
    s_mov_b32 s27, 0x00020000
    """)
    a(f"""
    v_lshrrev_b32 v2, 4, v0          ; lane/16
    v_and_b32 v3, 15, v0             ; lane%16
    v_mov_b32 v11, 0
    s_cmp_ge_u32 s18, 2
    s_cbranch_scc1 K1_NOWO
    s_lshl_b32 s30, s2, 1
    s_add_u32 s30, s30, s18          ; f
    s_lshr_b32 s31, s30, 4           ; ct
    s_and_b32 s32, s30, 15           ; ks
    s_lshl_b32 s32, s32, 15          ; 32ks*1024
    s_lshl_b32 s31, s31, 5           ; 16ct*2
    s_add_u32 s31, s31, s32
    v_lshlrev_b32 v10, 13, v2        ; 8*(lane/16)*1024
    v_lshl_add_u32 v10, v3, 1, v10
    v_add_u32 v10, s31, v10
    v_add_u32 v11, 4096, v10
    global_load_ushort v48, v10, s[12:13]
    global_load_ushort v49, v10, s[12:13] offset:1024
    global_load_ushort v50, v10, s[12:13] offset:2048
    global_load_ushort v51, v10, s[12:13] offset:3072
    global_load_ushort v52, v11, s[12:13]
    global_load_ushort v53, v11, s[12:13] offset:1024
    global_load_ushort v54, v11, s[12:13] offset:2048
    global_load_ushort v55, v11, s[12:13] offset:3072
    s_lshl_b32 s30, s30, 10
    s_add_u32 s30, s30, {WS_WOT}
    v_lshlrev_b32 v11, 4, v0
    v_add_u32 v11, s30, v11
    K1_NOWO:
    """)
    a(f"""
    v_lshrrev_b32 v2, 4, v0          ; lane/16
    v_and_b32 v3, 15, v0             ; lane%16
    s_lshl_b32 s19, s16, 6
    s_lshl_b32 s28, s18, 4
    s_add_u32 s19, s19, s28
    v_add_u32 v4, s19, v2
    v_lshlrev_b32 v4, 10, v4
    v_lshl_add_u32 v4, v3, 4, v4
    v_add_u32 v5, 4096, v4
    v_add_u32 v6, 8192, v4
    v_add_u32 v7, 12288, v4
    """)
    XR = 64
    for q in range(4):
        for j in range(4):
            a(f"global_load_dwordx4 {vr(XR+q*16+j*4,4)}, v{4+q}, s[4:5] offset:{j*256}")
    a(f"""
    v_lshrrev_b32 v8, 3, v0          ; lane/8
    v_and_b32 v9, 7, v0
    v_and_b32 v10, 1, v2             ; (lane>>4)&1
    v_lshlrev_b32 v10, 2, v10
    v_xor_b32 v9, v9, v10
    v_lshlrev_b32 v9, 4, v9
    v_lshl_add_u32 v8, v8, 10, v9
    s_lshl_b32 s28, s18, 17          ; w*16*8192
    s_lshl_b32 s29, s17, 7           ; cb*128
    s_add_u32 s28, s28, s29
    s_lshl_b32 s29, s18, 14          ; w*16*1024 (lds)
    s_add_u32 s29, s29, {K1_LDS_W}
    """)
    for t in range(16):
        a(f"s_mov_b32 m0, s29")
        a(f"s_add_u32 s29, s29, 1024")
        a(f"buffer_load_dwordx4 v8, s[20:23], s28 offen lds")
        a(f"s_add_u32 s28, s28, 8192")
    a(f"""
    v_lshlrev_b32 v9, 4, v0          ; lane*16
    s_lshl_b32 s28, s18, 12          ; w*4096
    s_add_u32 s29, s28, {K1_LDS_KV}
    """)
    for t in range(4):
        a(f"s_mov_b32 m0, s29")
        a(f"s_add_u32 s29, s29, 1024")
        a(f"buffer_load_dwordx4 v9, s[24:27], s28 offen lds")
        a(f"s_add_u32 s28, s28, 1024")
    a(f"""
    s_lshl_b32 s28, s18, 4
    v_add_u32 v16, s28, v2
    s_movk_i32 s29, 1040
    v_mul_lo_u32 v16, v16, s29
    v_lshl_add_u32 v16, v3, 4, v16
    s_mov_b32 s33, 0xffff0000
    s_mov_b32 s34, {f32bits(1.0/512)}
    s_mov_b32 s35, {f32bits(1e-5)}
    """)
    F = 128
    for q in range(4):
        a(f"s_waitcnt vmcnt({20 + 12 - 4*q})")
        X = XR + q*16
        for i in range(16):
            a(f"v_lshlrev_b32 v{F+2*i}, 16, v{X+i}")
            a(f"v_and_b32 v{F+2*i+1}, s33, v{X+i}")
        a(f"v_pk_add_f32 v[20:21], v[{F}:{F+1}], v[{F+2}:{F+3}]")
        a(f"v_pk_add_f32 v[22:23], v[{F+4}:{F+5}], v[{F+6}:{F+7}]")
        for i in range(2, 8):
            d = 20 if i % 2 == 0 else 22
            a(f"v_pk_add_f32 v[{d}:{d+1}], v[{d}:{d+1}], v[{F+4*i}:{F+4*i+1}]")
            a(f"v_pk_add_f32 v[{d}:{d+1}], v[{d}:{d+1}], v[{F+4*i+2}:{F+4*i+3}]")
        a("v_pk_add_f32 v[20:21], v[20:21], v[22:23]")
        a("v_add_f32 v20, v20, v21")
        for r in (8, 4, 2, 1):
            a("s_nop 1")
            a(f"v_add_f32_dpp v20, v20, v20 row_ror:{r} row_mask:0xf bank_mask:0xf")
        a(f"""
        v_mul_f32 v20, s34, v20
        v_cvt_pk_bf16_f32 v21, v20, v20
        v_lshlrev_b32 v21, 16, v21       ; m_b
        v_sub_f32 v24, v20, v21          ; mean - m_b
        """)
        for i in range(16):
            a(f"v_pk_add_f32 v[{F+2*i}:{F+2*i+1}], v[{F+2*i}:{F+2*i+1}], v[20:21] op_sel:[0,1] op_sel_hi:[1,1] neg_lo:[0,1] neg_hi:[0,1]")
        a(f"v_pk_mul_f32 v[22:23], v[{F}:{F+1}], v[{F}:{F+1}]")
        a(f"v_pk_mul_f32 v[26:27], v[{F+2}:{F+3}], v[{F+2}:{F+3}]")
        for i in range(2, 16):
            d = 22 if i % 2 == 0 else 26
            a(f"v_pk_fma_f32 v[{d}:{d+1}], v[{F+2*i}:{F+2*i+1}], v[{F+2*i}:{F+2*i+1}], v[{d}:{d+1}]")
        a("v_pk_add_f32 v[22:23], v[22:23], v[26:27]")
        a("v_add_f32 v22, v22, v23")
        for r in (8, 4, 2, 1):
            a("s_nop 1")
            a(f"v_add_f32_dpp v22, v22, v22 row_ror:{r} row_mask:0xf bank_mask:0xf")
        a(f"""
        v_mul_f32 v22, s34, v22          ; E[d^2]
        v_fma_f32 v22, -v24, v24, v22    ; var
        v_max_f32 v22, 0, v22
        v_cvt_pk_bf16_f32 v22, v22, v22
        v_lshlrev_b32 v22, 16, v22
        v_add_f32 v22, s35, v22
        v_cvt_pk_bf16_f32 v22, v22, v22
        v_lshlrev_b32 v22, 16, v22
        v_sqrt_f32 v22, v22
        s_nop 0
        v_cvt_pk_bf16_f32 v22, v22, v22
        v_lshlrev_b32 v22, 16, v22
        v_rcp_f32 v22, v22
        s_nop 0
        v_mov_b32 v23, v22
        """)
        for i in range(16):
            a(f"v_pk_mul_f32 v[{F+2*i}:{F+2*i+1}], v[{F+2*i}:{F+2*i+1}], v[22:23]")
        for i in range(16):
            a(f"v_cvt_pk_bf16_f32 v{X+i}, v{F+2*i}, v{F+2*i+1}")
        for j in range(4):
            a(f"ds_write_b128 v16, {vr(X+j*4,4)} offset:{q*4*1040 + j*256}")
    a(f"""
    s_lshr_b32 s28, s18, 1
    s_lshl_b32 s28, s28, 5           ; 32mi
    v_and_b32 v17, 31, v0
    v_add_u32 v17, s28, v17
    v_mul_lo_u32 v17, v17, s29
    v_lshrrev_b32 v18, 5, v0
    v_lshl_add_u32 v17, v18, 4, v17
    v_lshrrev_b32 v19, 2, v3         ; li/4
    v_lshl_add_u32 v18, v18, 3, v19
    v_and_b32 v20, 1, v2             ; G%2
    v_lshlrev_b32 v20, 5, v20        ; *16*2
    v_and_b32 v21, 3, v3
    v_lshl_add_u32 v20, v21, 3, v20  ; + (li%4)*8
    s_and_b32 s28, s18, 1
    s_lshl_b32 s28, s28, 6
    v_add_u32 v20, s28, v20          ; + 32ni*2
    v_lshrrev_b32 v21, 1, v19
    v_lshlrev_b32 v21, 6, v21
    v_xor_b32 v20, v20, v21
    v_lshl_add_u32 v18, v18, 7, v20
    v_add_u32 v18, {K1_LDS_W}, v18
    s_waitcnt vmcnt(0) lgkmcnt(0)
    s_barrier
    s_cmp_ge_u32 s18, 2
    s_cbranch_scc1 K1_NOWO2
    v_lshl_or_b32 v12, v49, 16, v48
    v_lshl_or_b32 v13, v51, 16, v50
    v_lshl_or_b32 v14, v53, 16, v52
    v_lshl_or_b32 v15, v55, 16, v54
    global_store_dwordx4 v11, v[12:15], s[14:15]
    K1_NOWO2:
    """)
    ACC = 32
    def rd(ks):
        s = ks % 4
        a(f"ds_read_b64_tr_b16 v[{64+8*s}:{65+8*s}], v18 offset:{ks*2048}")
        a(f"ds_read_b64_tr_b16 v[{66+8*s}:{67+8*s}], v18 offset:{ks*2048+512}")
        a(f"ds_read_b128 v[{68+8*s}:{71+8*s}], v17 offset:{ks*32}")
    for ks in range(4):
        rd(ks)
    for ks in range(32):
        s = ks % 4
        rem = min(3, 31 - ks)
        a(f"s_waitcnt lgkmcnt({3*rem})")
        c = "0" if ks == 0 else vr(ACC, 16)
        a(f"v_mfma_f32_32x32x16_bf16 {vr(ACC,16)}, v[{64+8*s}:{67+8*s}], v[{68+8*s}:{71+8*s}], {c}")
        if ks + 4 < 32:
            rd(ks + 4)
    a(f"""
    s_lshl_b32 s28, s16, 6           ; 64rb
    s_lshr_b32 s30, s18, 1
    s_lshl_b32 s30, s30, 5
    s_add_u32 s28, s28, s30
    v_and_b32 v20, 31, v0
    v_add_u32 v20, s28, v20
    v_lshlrev_b32 v20, 10, v20       ; row*1024
    v_lshrrev_b32 v21, 5, v0
    v_lshl_add_u32 v20, v21, 3, v20  ; + 4*(l/32)*2
    s_lshl_b32 s28, s17, 7           ; 64cb*2
    s_and_b32 s30, s18, 1
    s_lshl_b32 s30, s30, 6
    s_add_u32 s28, s28, s30
    v_add_u32 v20, s28, v20
    s_mov_b32 s31, {f32bits(QSCALE)}
    s_nop 7
    """)
    for r in range(16):
        a(f"v_mul_f32 v{ACC+r}, s31, v{ACC+r}")
    for g in range(4):
        a(f"v_cvt_pk_bf16_f32 v{48+2*g}, v{ACC+4*g}, v{ACC+4*g+1}")
        a(f"v_cvt_pk_bf16_f32 v{49+2*g}, v{ACC+4*g+2}, v{ACC+4*g+3}")
    for g in range(4):
        a(f"global_store_dwordx2 v20, v[{48+2*g}:{49+2*g}], s[14:15] offset:{16*g}")
    a(f"""
    s_cmp_lg_u32 s18, 3
    s_cbranch_scc1 K1_END
    s_and_b32 s28, s17, 3
    s_lshl_b32 s28, s28, 4           ; 16*(cb&3)
    v_add_u32 v17, s28, v3
    v_mul_lo_u32 v17, v17, s29
    v_lshl_add_u32 v17, v2, 4, v17
    v_lshrrev_b32 v19, 2, v3         ; li/4
    v_lshl_add_u32 v18, v2, 3, v19
    v_lshlrev_b32 v18, 5, v18        ; *32B
    v_and_b32 v21, 3, v3
    v_lshl_add_u32 v18, v21, 3, v18
    v_add_u32 v18, {K1_LDS_KV}, v18
    """)
    def rd2(ks):
        s = ks % 4
        a(f"ds_read_b64_tr_b16 v[{64+8*s}:{65+8*s}], v18 offset:{ks*1024}")
        a(f"ds_read_b64_tr_b16 v[{66+8*s}:{67+8*s}], v18 offset:{ks*1024+128}")
        a(f"ds_read_b128 v[{68+8*s}:{71+8*s}], v17 offset:{ks*64}")
    for isv in (0, 1):
        if isv == 0:
            a("s_cmp_ge_u32 s17, 4")
            a("s_cbranch_scc1 K1_V")
        else:
            a.label("K1_V")
        for ks in range(4):
            rd2(ks)
        for ks in range(16):
            s = ks % 4
            rem = min(3, 15 - ks)
            a(f"s_waitcnt lgkmcnt({3*rem})")
            c = "0" if ks == 0 else "v[32:35]"
            W = f"v[{64+8*s}:{67+8*s}]"; X = f"v[{68+8*s}:{71+8*s}]"
            if isv == 0:
                a(f"v_mfma_f32_16x16x32_bf16 v[32:35], {W}, {X}, {c}")
            else:
                a(f"v_mfma_f32_16x16x32_bf16 v[32:35], {X}, {W}, {c}")
            if ks + 4 < 16:
                rd2(ks + 4)
        if isv == 0:
            a(f"""
            s_lshl_b32 s30, s16, 6
            s_add_u32 s30, s30, s28
            v_add_u32 v20, s30, v3           ; key
            v_lshrrev_b32 v21, 5, v20
            v_lshlrev_b32 v21, 10, v21
            v_and_b32 v20, 31, v20
            v_lshl_add_u32 v20, v20, 4, v21
            v_lshrrev_b32 v21, 1, v2
            v_lshl_add_u32 v20, v21, 9, v20
            v_and_b32 v21, 1, v2
            v_lshl_add_u32 v20, v21, 3, v20
            v_add_u32 v20, {WS_KF}, v20
            """)
        else:
            a(f"""
            s_lshl_b32 s30, s16, 2
            s_and_b32 s31, s17, 3
            s_add_u32 s30, s30, s31
            s_lshl_b32 s30, s30, 9
            s_add_u32 s30, s30, {WS_VF}
            v_lshlrev_b32 v20, 4, v3
            v_and_b32 v21, 1, v2
            v_lshl_add_u32 v20, v21, 8, v20
            v_lshrrev_b32 v21, 1, v2
            v_lshl_add_u32 v20, v21, 3, v20
            v_add_u32 v20, s30, v20
            """)
        a(f"""
        s_nop 4
        v_cvt_pk_bf16_f32 v36, v32, v33
        v_cvt_pk_bf16_f32 v37, v34, v35
        global_store_dwordx2 v20, v[36:37], s[14:15]
        s_endpgm
        """)
    a.label("K1_END")
    a("s_endpgm")
    return name, 160, 256, 256, K1_LDS
```

```python
from common import *

K2_LDS_K = 0
K2_LDS_V = 65536
K2_LDS_O = 131072
K2_LDS_ST = 131072 + 8320
K2_LDS = K2_LDS_ST + 2048
BIAS = 40.0

Q = 4; NM = 16; S0 = 32; S1 = 48; P = 64; O = 72; KB = (88, 92); VB = (96, 104)
AK = 112; AV = 113; AK2 = 14; AV2 = 15
WOP = 128

def gen_k2(a):
    name = "k2_attn_kernel"
    kernel_header(a, name)
    a(f"""
    s_cmp_ge_u32 s2, 256
    s_cbranch_scc1 K2_END
    s_load_dwordx2 s[4:5], s[0:1], 0       ; x
    s_load_dwordx2 s[14:15], s[0:1], 88    ; ws
    v_lshrrev_b32 v1, 6, v0
    v_and_b32 v0, 63, v0
    s_and_b32 s16, s2, 7
    s_lshl_b32 s16, s16, 5
    s_lshr_b32 s17, s2, 3
    s_add_u32 s16, s16, s17
    s_lshl_b32 s16, s16, 3           ; row0
    v_readfirstlane_b32 s18, v1
    s_mov_b32 s40, 0
    s_waitcnt lgkmcnt(0)
    """)
    stamp_init(a)
    make_srd(a, 20, 14, 131072, WS_KF)
    a(f"""
    v_and_b32 v2, 7, v0              ; r
    v_bfe_u32 v3, v0, 3, 2           ; hl
    v_lshrrev_b32 v8, 5, v0          ; l/32
    v_add_u32 v9, s16, v2
    v_lshlrev_b32 v9, 10, v9
    v_lshl_add_u32 v9, v3, 5, v9
    v_lshl_add_u32 v9, v8, 4, v9
    s_lshl_b32 s19, s18, 7           ; 4w*32
    v_add_u32 v9, s19, v9
    global_load_dwordx4 v[{Q}:{Q+3}], v9, s[14:15]
    v_lshlrev_b32 v{AK}, 4, v0       ; lane*16
    """)
    a("s_lshl_b32 s28, s18, 11          ; 2w*1024")
    for c in range(4):
        for kv in range(2):
            for i in range(2):
                off = c*16*1024 + i*1024 + kv*65536
                a(f"s_add_u32 s29, s28, {off}")
                a(f"s_mov_b32 m0, s29")
                a(f"s_nop 0")
                a(f"buffer_load_dwordx4 v{AK}, s[20:23], s29 offen lds")
    a(f"""
    v_and_b32 v10, 15, v0
    v_lshlrev_b32 v10, 4, v10
    v_lshl_add_u32 v{AV}, v8, 8, v10
    v_add_u32 v{AV}, {K2_LDS_V}, v{AV}
    v_and_b32 v10, 27, v0            ; l%32 with bit2 cleared : 16 and 20 -> 16
    v_and_b32 v10, 31, v10
    v_cmp_eq_u32 vcc, 16, v10
    v_mov_b32 v11, 0x3f803f80
    s_mov_b32 s42, 0xffff
    s_mov_b32 s43, 0xffff
    s_nop 1
    v_cndmask_b32 v11, 0, v11, vcc
    """)
    for i in range(16):
        a(f"v_mov_b32 v{VB[0]+i}, v11")
    a(f"""
    s_waitcnt vmcnt(12)
    s_barrier
    ds_read_b128 v[{KB[0]}:{KB[0]+3}], v{AK}
    s_waitcnt lgkmcnt(0)
    v_mfma_f32_32x32x16_bf16 v[{S0}:{S0+15}], v[{KB[0]}:{KB[0]+3}], v[{Q}:{Q+3}], 0
    s_nop 15
    v_max3_f32 v10, v{S0}, v{S0+1}, v{S0+2}
    """)
    for i in range(3, 15, 2):
        a(f"v_max3_f32 v10, v10, v{S0+i}, v{S0+i+1}")
    a(f"""
    v_max_f32 v10, v10, v{S0+15}
    v_mov_b32 v11, v10
    s_nop 1
    v_permlane32_swap_b32 v10, v11
    s_mov_b32 s44, {f32bits(BIAS)}
    v_max_f32 v10, v10, v11
    v_add_f32 v10, s44, v10
    v_sub_f32 v10, 0, v10
    """)
    stamp(a)
    a.label("K2_RESTART")
    for i in range(16):
        a(f"v_mov_b32 v{NM+i}, v10")
    for i in range(16):
        a(f"v_mov_b32 v{O+i}, 0")
    a(f"""
    v_mov_b32 v{AK2}, v{AK}
    v_mov_b32 v{AV2}, v{AV}
    s_mov_b32 s47, 0
    ds_read_b128 v[{KB[0]}:{KB[0]+3}], v{AK}
    ds_read_b128 v[{KB[1]}:{KB[1]+3}], v{AK} offset:1024
    s_mov_b64 exec, s[42:43]
    ds_read_b128 v[{VB[0]}:{VB[0]+3}], v{AV}
    ds_read_b128 v[{VB[0]+4}:{VB[0]+7}], v{AV} offset:512
    s_mov_b64 exec, -1
    s_waitcnt lgkmcnt(0)
    v_mfma_f32_32x32x16_bf16 v[{S0}:{S0+15}], v[{KB[0]}:{KB[0]+3}], v[{Q}:{Q+3}], v[{NM}:{NM+15}]
    s_nop 7
    K2_LOOP:
    s_cmp_lg_u32 s40, 0
    s_cbranch_scc1 K2_BODY
    s_cmp_eq_u32 s47, 1
    s_cbranch_scc0 K2_N1
    s_waitcnt vmcnt(8)
    s_barrier
    s_branch K2_BODY
    K2_N1:
    s_cmp_eq_u32 s47, 3
    s_cbranch_scc0 K2_N3
    s_waitcnt vmcnt(4)
    s_barrier
    s_branch K2_BODY
    K2_N3:
    s_cmp_eq_u32 s47, 5
    s_cbranch_scc0 K2_N5
    s_waitcnt vmcnt(0)
    s_barrier
    s_branch K2_BODY
    K2_N5:
    s_cmp_eq_u32 s47, 6
    s_cbranch_scc0 K2_BODY
    s_lshl_b32 s28, s18, 16          ; 4w*16*1024
    s_add_u32 s28, s28, {WS_WOT}
    v_add_u32 v114, s28, v{AK}
    v_add_u32 v115, 16384, v114
    v_add_u32 v116, 32768, v114
    v_add_u32 v117, 49152, v114
    """)
    for ks in range(8):
        for tt in range(4):
            r = WOP + (ks*4+tt)*4
            off = ks*1024
            if ks < 4:
                a(f"global_load_dwordx4 v[{r}:{r+3}], v{114+tt}, s[14:15] offset:{off}")
            else:
                a(f"global_load_dwordx4 v[{r}:{r+3}], v{118+tt}, s[14:15] offset:{off-4096}")
        if ks == 3:
            for tt in range(4):
                a(f"v_add_u32 v{118+tt}, 4096, v{114+tt}")
    a.label("K2_BODY")
    for t in range(8):
        S = S0 if t % 2 == 0 else S1
        Sn = S1 if t % 2 == 0 else S0
        Kn = KB[(t+1) % 2]; Knn = KB[t % 2]
        Vc = VB[t % 2]; Vn = VB[(t+1) % 2]
        a(f"v_mfma_f32_32x32x16_bf16 v[{Sn}:{Sn+15}], v[{Kn}:{Kn+3}], v[{Q}:{Q+3}], v[{NM}:{NM+15}]")
        a(f"ds_read_b128 v[{Knn}:{Knn+3}], v{AK2} offset:{(t+2)*1024}")
        a(f"s_mov_b64 exec, s[42:43]")
        a(f"ds_read_b128 v[{Vn}:{Vn+3}], v{AV2} offset:{(t+1)*1024}")
        a(f"ds_read_b128 v[{Vn+4}:{Vn+7}], v{AV2} offset:{(t+1)*1024+512}")
        a(f"s_mov_b64 exec, -1")
        for i in range(8):
            a(f"v_exp_f32 v{S+i}, v{S+i}")
        for i in range(4):
            a(f"v_cvt_pk_bf16_f32 v{P+i}, v{S+2*i}, v{S+2*i+1}")
        for i in range(8, 12):
            a(f"v_exp_f32 v{S+i}, v{S+i}")
        a(f"v_mfma_f32_32x32x16_bf16 v[{O}:{O+15}], v[{Vc}:{Vc+3}], v[{P}:{P+3}], v[{O}:{O+15}]")
        for i in range(12, 16):
            a(f"v_exp_f32 v{S+i}, v{S+i}")
        for i in range(4, 8):
            a(f"v_cvt_pk_bf16_f32 v{P+i}, v{S+2*i}, v{S+2*i+1}")
        if t == 7:
            a(f"v_add_u32 v{AK2}, 8192, v{AK2}")
            a(f"v_add_u32 v{AV2}, 8192, v{AV2}")
            a("s_add_u32 s47, s47, 1")
            a("s_cmp_lt_u32 s47, 8")
        a("s_waitcnt lgkmcnt(0)")
        if t != 7:
            a("s_nop 0")
        a(f"v_mfma_f32_32x32x16_bf16 v[{O}:{O+15}], v[{Vc+4}:{Vc+7}], v[{P+4}:{P+7}], v[{O}:{O+15}]")
    a("s_cbranch_scc1 K2_LOOP")
    stamp(a)
    a(f"""
    s_mov_b32 s45, {f32bits(4096.0)}
    s_nop 15
    v_cmp_ngt_f32 vcc, s45, v{O+8}       ; !(4096 > l)
    s_cmp_lg_u32 s40, 0
    s_cbranch_scc1 K2_OK
    s_cbranch_vccz K2_OK
    """)
    a(f"""
    s_mov_b32 s40, 1
    v_mov_b32 v10, 0xff800000
    v_mov_b32 v11, v{AK}
    s_mov_b32 s46, 0
    K2_MAXLOOP:
    ds_read_b128 v[{KB[0]}:{KB[0]+3}], v11
    s_waitcnt lgkmcnt(0)
    v_mfma_f32_32x32x16_bf16 v[{S0}:{S0+15}], v[{KB[0]}:{KB[0]+3}], v[{Q}:{Q+3}], 0
    s_nop 15
    """)
    for i in range(0, 16, 2):
        a(f"v_max3_f32 v10, v10, v{S0+i}, v{S0+i+1}")
    a(f"""
    v_add_u32 v11, 1024, v11
    s_add_u32 s46, s46, 1
    s_cmp_lt_u32 s46, 64
    s_cbranch_scc1 K2_MAXLOOP
    v_mov_b32 v11, v10
    s_nop 1
    v_permlane32_swap_b32 v10, v11
    s_nop 0
    v_max_f32 v10, v10, v11
    v_sub_f32 v10, 0, v10
    s_branch K2_RESTART
    K2_OK:
    """)
    slotsA = [16 + 4*i for i in range(14)] + [88, 92]
    BF = (96, 100, 104, 108)
    a(f"""
    v_add_u32 v114, 8192, v114
    v_add_u32 v115, 8192, v115
    v_add_u32 v116, 8192, v116
    v_add_u32 v117, 8192, v117
    """)
    for ks in range(8, 12):
        for tt in range(4):
            r = slotsA[(ks-8)*4+tt]
            a(f"global_load_dwordx4 v[{r}:{r+3}], v{114+tt}, s[14:15] offset:{(ks-8)*1024}")
    a(f"""
    v_lshrrev_b32 v12, 4, v0             ; l/16
    v_add_u32 v13, s16, v2               ; row0 + l%8
    v_lshlrev_b32 v13, 10, v13
    v_lshl_add_u32 v13, v12, 3, v13
    v_add_u32 v13, s19, v13              ; + 64w*2   (s19 = w*128)
    global_load_dwordx2 v[122:123], v13, s[4:5]
    global_load_dwordx2 v[124:125], v13, s[4:5] offset:32
    global_load_dwordx2 v[126:127], v13, s[4:5] offset:64
    global_load_dwordx2 v[118:119], v13, s[4:5] offset:96
    """)
    a(f"""
    v_rcp_f32 v10, v{O+8}
    s_movk_i32 s29, 1040
    v_mul_lo_u32 v11, v2, s29            ; row*1040
    v_lshl_add_u32 v11, v3, 5, v11       ; + hl*32
    v_lshl_add_u32 v11, v8, 3, v11       ; + 4h'*2
    v_add_u32 v11, s19, v11              ; + 4w*32
    v_add_u32 v11, {K2_LDS_O}, v11
    """)
    for i in range(8):
        a(f"v_mul_f32 v{O+i}, v{O+i}, v10")
    for i in range(4):
        a(f"v_cvt_pk_bf16_f32 v{O+i}, v{O+2*i}, v{O+2*i+1}")
    a(f"""
    ds_write_b64 v11, v[{O}:{O+1}]
    ds_write_b64 v11, v[{O+2}:{O+3}] offset:16
    v_mul_lo_u32 v11, v2, s29
    v_lshl_add_u32 v11, v12, 4, v11      ; (l%8)*1040 + (l/16)*16
    v_add_u32 v11, {K2_LDS_O}, v11
    s_waitcnt lgkmcnt(0)
    s_barrier
    """)
    stamp(a)
    ACC = 72
    def frag(ks, tt):
        if ks < 8: return WOP + (ks*4+tt)*4
        if ks < 12: return slotsA[(ks-8)*4+tt]
        return WOP + ((ks-12)*4+tt)*4
    for ks in range(4):
        a(f"ds_read_b128 v[{BF[ks]}:{BF[ks]+3}], v11 offset:{ks*64}")
    for ks in range(16):
        b = BF[ks % 4]
        if ks == 0:
            a("s_waitcnt vmcnt(20)")
        if ks == 8:
            a("s_waitcnt vmcnt(20)")
        if ks == 12:
            a("s_waitcnt vmcnt(0)")
        rem = min(3, 15 - ks)
        a(f"s_waitcnt lgkmcnt({rem})")
        for tt in range(4):
            f = frag(ks, tt)
            c = "0" if ks == 0 else f"v[{ACC+4*tt}:{ACC+4*tt+3}]"
            a(f"v_mfma_f32_16x16x32_bf16 v[{ACC+4*tt}:{ACC+4*tt+3}], v[{f}:{f+3}], v[{b}:{b+3}], {c}")
        if ks + 4 < 16:
            a(f"ds_read_b128 v[{b}:{b+3}], v11 offset:{(ks+4)*64}")
        if ks == 3:
            for tt in range(4):
                a(f"v_add_u32 v{114+tt}, 4096, v{114+tt}")
            for k2 in range(12, 16):
                for tt in range(4):
                    r = frag(k2, tt)
                    a(f"global_load_dwordx4 v[{r}:{r+3}], v{114+tt}, s[14:15] offset:{(k2-12)*1024}")
    stamp(a)
    XR = [122, 124, 126, 118]
    H = 16
    a("s_mov_b32 s33, 0xffff0000")
    a("s_nop 7")
    for tt in range(4):
        for pr in range(2):
            A0 = ACC + 4*tt + 2*pr
            a(f"v_cvt_pk_bf16_f32 v40, v{A0}, v{A0+1}")
            a(f"v_lshlrev_b32 v41, 16, v40")
            a(f"v_and_b32 v42, s33, v40")
            a(f"v_lshlrev_b32 v43, 16, v{XR[tt]+pr}")
            a(f"v_and_b32 v44, s33, v{XR[tt]+pr}")
            a(f"v_add_f32 v41, v41, v43")
            a(f"v_add_f32 v42, v42, v44")
            a(f"v_cvt_pk_bf16_f32 v{32+2*tt+pr}, v41, v42")
            a(f"v_lshlrev_b32 v{H+4*tt+2*pr}, 16, v{32+2*tt+pr}")
            a(f"v_and_b32 v{H+4*tt+2*pr+1}, s33, v{32+2*tt+pr}")
    a(f"v_add_f32 v40, v{H}, v{H+1}")
    for i in range(2, 16):
        a(f"v_add_f32 v40, v40, v{H+i}")
    a(f"""
    v_lshlrev_b32 v45, 7, v2
    v_lshl_add_u32 v45, v12, 2, v45
    s_lshl_b32 s28, s18, 4
    v_add_u32 v45, s28, v45
    v_add_u32 v45, {K2_LDS_ST}, v45
    v_lshlrev_b32 v46, 7, v2
    v_add_u32 v46, {K2_LDS_ST}, v46
    ds_write_b32 v45, v40
    s_mov_b32 s34, {f32bits(1.0/512)}
    s_mov_b32 s35, {f32bits(1e-5)}
    s_waitcnt lgkmcnt(0)
    s_barrier
    """)
    def read_sum(off, dst):
        for i in range(8):
            a(f"ds_read_b128 v[{48+4*i}:{51+4*i}], v46 offset:{off+16*i}")
        a("s_waitcnt lgkmcnt(0)")
        a(f"v_add_f32 v{dst}, v48, v49")
        for i in range(2, 32):
            a(f"v_add_f32 v{dst}, v{dst}, v{48+i}")
    read_sum(0, 40)
    a(f"""
    v_mul_f32 v40, s34, v40              ; mean
    v_cvt_pk_bf16_f32 v41, v40, v40
    v_lshlrev_b32 v41, 16, v41           ; m_b
    v_sub_f32 v42, v40, v41
    """)
    for i in range(16):
        a(f"v_sub_f32 v{H+i}, v{H+i}, v41")
    a(f"v_mul_f32 v43, v{H}, v{H}")
    for i in range(1, 16):
        a(f"v_fmac_f32 v43, v{H+i}, v{H+i}")
    a(f"""
    ds_write_b32 v45, v43 offset:1024
    s_waitcnt lgkmcnt(0)
    s_barrier
    """)
    read_sum(1024, 43)
    a(f"""
    v_mul_f32 v43, s34, v43
    v_fma_f32 v43, -v42, v42, v43
    v_max_f32 v43, 0, v43
    v_cvt_pk_bf16_f32 v43, v43, v43
    v_lshlrev_b32 v43, 16, v43
    v_add_f32 v43, s35, v43
    v_cvt_pk_bf16_f32 v43, v43, v43
    v_lshlrev_b32 v43, 16, v43
    v_sqrt_f32 v43, v43
    s_nop 0
    v_cvt_pk_bf16_f32 v43, v43, v43
    v_lshlrev_b32 v43, 16, v43
    v_rcp_f32 v43, v43
    s_nop 0
    """)
    for i in range(16):
        a(f"v_mul_f32 v{H+i}, v{H+i}, v43")
    for i in range(8):
        a(f"v_cvt_pk_bf16_f32 v{48+i}, v{H+2*i}, v{H+2*i+1}")
    a(f"""
    s_mov_b32 s42, 0x00ff00ff
    s_mov_b32 s43, 0x00ff00ff
    v_add_u32 v14, {WS_H}, v13
    v_add_u32 v15, {WS_HN}, v13
    s_mov_b64 exec, s[42:43]
    """)
    for tt in range(4):
        a(f"global_store_dwordx2 v14, v[{32+2*tt}:{33+2*tt}], s[14:15] offset:{32*tt}")
        a(f"global_store_dwordx2 v15, v[{48+2*tt}:{49+2*tt}], s[14:15] offset:{32*tt}")
    stamp(a)
    a.label("K2_END")
    a("s_endpgm")
    return name, 256, 256, 512, K2_LDS
```

```python
from common import *

K3_STAGE = 49152
K3_LDS = 3 * K3_STAGE
GELU_C = -2.0 * math.sqrt(2.0/math.pi) * math.log2(math.e)

def gen_k3(a):
    name = "k3_ffn_up_kernel"
    kernel_header(a, name)
    a(f"""
    s_cmp_ge_u32 s2, 224
    s_cbranch_scc1 K3_END
    s_load_dwordx4 s[4:7], s[0:1], 48
    s_load_dwordx2 s[14:15], s[0:1], 88    ; ws
    v_lshrrev_b32 v1, 6, v0
    v_and_b32 v0, 63, v0
    s_and_b32 s16, s2, 7
    s_lshl_b32 s16, s16, 1           ; 2*xcd
    s_lshr_b32 s17, s2, 3            ; idx 0..27
    s_cmp_ge_u32 s17, 14
    s_cselect_b32 s19, 1, 0
    s_add_u32 s16, s16, s19          ; mb
    s_mul_i32 s19, s19, 14
    s_sub_u32 s17, s17, s19          ; fb
    v_readfirstlane_b32 s18, v1
    s_waitcnt lgkmcnt(0)
    """)
    stamp_init(a)
    make_srd(a, 20, 14, 2048*1024, WS_HN)
    make_srd(a, 24, 4, 512*3584)
    make_srd(a, 28, 6, 512*3584)
    a(f"""
    v_lshrrev_b32 v2, 4, v0          ; lane/16
    v_and_b32 v3, 15, v0             ; lane%16
    v_lshrrev_b32 v4, 3, v0          ; lane/8
    v_and_b32 v5, 7, v0              ; lane%8
    v_xor_b32 v6, v5, v2             ; e=0
    v_lshlrev_b32 v6, 4, v6
    v_lshl_add_u32 v6, v4, 10, v6    ; A voff e=0
    v_add_u32 v7, 4, v2
    v_and_b32 v7, 7, v7
    v_xor_b32 v7, v5, v7
    v_lshlrev_b32 v7, 4, v7
    v_lshl_add_u32 v7, v4, 10, v7
    v_add_u32 v7, 8192, v7
    v_lshlrev_b32 v8, 2, v2
    v_xor_b32 v8, v3, v8
    v_lshlrev_b32 v8, 4, v8
    s_movk_i32 s33, 3584
    v_mul_lo_u32 v9, v2, s33
    v_add_u32 v8, v8, v9             ; G voff e=0
    v_add_u32 v9, {4*3584}, v8       ; G voff e=1
    s_lshl_b32 s34, s16, 17
    s_lshl_b32 s35, s18, 14          ; 2w*8*1024
    s_add_u32 s34, s34, s35
    s_mul_i32 s35, s18, {8*3584}     ; 2w*4*3584
    s_lshl_b32 s36, s17, 8
    s_add_u32 s35, s35, s36
    s_lshl_b32 s36, s18, 11          ; lds: 2w*1024
    """)
    def dma(kk):
        st = (kk % 3) * K3_STAGE
        a(f"s_add_u32 s37, s36, {st}")
        a(f"s_mov_b32 m0, s37")
        a(f"s_add_u32 s38, s34, {kk*128}")
        a(f"buffer_load_dwordx4 v6, s[20:23], s38 offen lds")
        a(f"s_add_u32 m0, s37, 1024")
        a(f"s_add_u32 s39, s35, {kk*64*3584}")
        a(f"buffer_load_dwordx4 v7, s[20:23], s38 offen lds")
        a(f"s_add_u32 m0, s37, 16384")
        a(f"s_nop 0")
        a(f"buffer_load_dwordx4 v8, s[24:27], s39 offen lds")
        a(f"s_add_u32 m0, s37, {16384+1024}")
        a(f"s_nop 0")
        a(f"buffer_load_dwordx4 v9, s[24:27], s39 offen lds")
        a(f"s_add_u32 m0, s37, 32768")
        a(f"s_nop 0")
        a(f"buffer_load_dwordx4 v8, s[28:31], s39 offen lds")
        a(f"s_add_u32 m0, s37, {32768+1024}")
        a(f"s_nop 0")
        a(f"buffer_load_dwordx4 v9, s[28:31], s39 offen lds")
    dma(0); dma(1)
    AA = 16
    AW = 28
    a(f"""
    v_and_b32 v10, 31, v0
    v_lshrrev_b32 v11, 5, v0         ; h
    s_lshr_b32 s40, s18, 2
    s_lshl_b32 s40, s40, 6
    v_add_u32 v12, s40, v10
    v_lshlrev_b32 v12, 7, v12        ; row*128
    v_bfe_u32 v13, v10, 1, 3         ; x
    """)
    for ss in range(4):
        a(f"v_add_u32 v14, {2*ss}, v11")
        a(f"v_xor_b32 v14, v14, v13")
        a(f"v_lshl_add_u32 v{AA+ss}, v14, 4, v12")
        a(f"v_add_u32 v{AA+4+ss}, {K3_STAGE}, v{AA+ss}")
        a(f"v_add_u32 v{AA+8+ss}, {2*K3_STAGE}, v{AA+ss}")
    a(f"""
    v_lshrrev_b32 v14, 2, v3         ; li/4
    v_lshl_add_u32 v15, v11, 3, v14  ; krow
    v_and_b32 v10, 1, v2             ; G%2
    v_lshlrev_b32 v10, 5, v10
    v_and_b32 v12, 3, v3
    v_lshl_add_u32 v10, v12, 3, v10
    s_and_b32 s40, s18, 3
    s_lshl_b32 s40, s40, 6
    v_add_u32 v10, s40, v10          ; colbyte
    v_lshlrev_b32 v14, 6, v14        ; (li/4)<<2 <<4
    v_xor_b32 v10, v10, v14
    v_lshl_add_u32 v10, v15, 8, v10
    v_add_u32 v{AW}, 16384, v10
    v_add_u32 v{AW+1}, {16384+K3_STAGE}, v10
    v_add_u32 v{AW+2}, {16384+2*K3_STAGE}, v10
    """)
    ACG = 64; ACU = 96
    FR = (32, 48)
    def reads(st, ss, fs):
        f = FR[fs]
        a(f"ds_read_b64_tr_b16 v[{f}:{f+1}], v{AW+st} offset:{ss*4096}")
        a(f"ds_read_b64_tr_b16 v[{f+2}:{f+3}], v{AW+st} offset:{ss*4096+1024}")
        a(f"ds_read_b128 v[{f+8}:{f+11}], v{AA+4*st+ss}")
        a(f"ds_read_b64_tr_b16 v[{f+4}:{f+5}], v{AW+st} offset:{16384+ss*4096}")
        a(f"ds_read_b64_tr_b16 v[{f+6}:{f+7}], v{AW+st} offset:{16384+ss*4096+1024}")
        a(f"ds_read_b128 v[{f+12}:{f+15}], v{AA+4*st+ss} offset:4096")
    NK = 8
    for kk in range(NK):
        st = kk % 3
        a(f"s_waitcnt vmcnt({6 if kk+1 < NK else 0})")
        a("s_barrier")
        if kk + 2 < NK:
            dma(kk + 2)
        reads(st, 0, 0)
        for ss in range(4):
            fs = ss % 2
            if ss < 3:
                reads(st, ss+1, 1-fs)
                a("s_waitcnt lgkmcnt(6)")
            else:
                a("s_waitcnt lgkmcnt(0)")
            f = FR[fs]
            first = (kk == 0 and ss == 0)
            for mt in range(2):
                for (acc, wf) in ((ACG, f), (ACU, f+4)):
                    A = acc + 16*mt
                    c = "0" if first else f"v[{A}:{A+15}]"
                    a(f"v_mfma_f32_32x32x16_bf16 v[{A}:{A+15}], v[{wf}:{wf+3}], v[{f+8+4*mt}:{f+11+4*mt}], {c}")
    stamp(a)
    a(f"""
    v_and_b32 v10, 31, v0
    s_lshl_b32 s40, s16, 7
    s_lshr_b32 s41, s18, 2
    s_lshl_b32 s41, s41, 6
    s_add_u32 s40, s40, s41
    v_add_u32 v10, s40, v10
    v_mul_lo_u32 v10, v10, s33       ; row*3584
    v_lshl_add_u32 v10, v11, 3, v10
    s_lshl_b32 s40, s17, 8
    s_and_b32 s41, s18, 3
    s_lshl_b32 s41, s41, 6
    s_add_u32 s40, s40, s41
    s_add_u32 s40, s40, {WS_HH}
    v_add_u32 v10, s40, v10
    v_add_u32 v12, {32*3584}, v10
    s_mov_b32 s42, {f32bits(GELU_C)}
    s_mov_b32 s43, {f32bits(GELU_C*0.044715)}
    v_mov_b32 v13, s42
    s_nop 4
    """)
    T = 32
    for mt in range(2):
        G = ACG + 16*mt; U = ACU + 16*mt
        for r in range(16):
            a(f"v_mul_f32 v{T+r}, v{G+r}, v{G+r}")
        for r in range(16):
            a(f"v_fma_f32 v{T+r}, v{T+r}, s43, v13")
        for r in range(16):
            a(f"v_mul_f32 v{T+r}, v{T+r}, v{G+r}")
        for r in range(16):
            a(f"v_exp_f32 v{T+r}, v{T+r}")
        for r in range(16):
            a(f"v_add_f32 v{T+r}, 1.0, v{T+r}")
        for r in range(16):
            a(f"v_rcp_f32 v{T+r}, v{T+r}")
        for r in range(16):
            a(f"v_mul_f32 v{G+r}, v{G+r}, v{U+r}")
        for r in range(16):
            a(f"v_mul_f32 v{T+r}, v{T+r}, v{G+r}")
        for i in range(8):
            a(f"v_cvt_pk_bf16_f32 v{T+16+i}, v{T+2*i}, v{T+2*i+1}")
        for g in range(4):
            a(f"global_store_dwordx2 v{10+2*mt}, v[{T+16+2*g}:{T+17+2*g}], s[14:15] offset:{16*g}")
        a("s_nop 1")
    stamp(a)
    a.label("K3_END")
    a("s_endpgm")
    return name, 128, 224, 512, K3_LDS
```

```python
from common import *

K4_STAGE = 32768
K4_LDS = 4 * K4_STAGE

def gen_k4(a):
    name = "k4_ffn_down_kernel"
    kernel_header(a, name)
    a(f"""
    s_cmp_ge_u32 s2, 256
    s_cbranch_scc1 K4_END
    s_load_dwordx4 s[4:7], s[0:1], 64
    s_load_dwordx2 s[14:15], s[0:1], 88    ; ws
    v_lshrrev_b32 v1, 6, v0
    v_and_b32 v0, 63, v0
    s_and_b32 s16, s2, 7
    s_lshl_b32 s16, s16, 2
    s_lshr_b32 s17, s2, 6
    s_add_u32 s16, s16, s17
    s_lshr_b32 s17, s2, 3
    s_and_b32 s17, s17, 7            ; nb
    v_readfirstlane_b32 s18, v1
    s_waitcnt lgkmcnt(0)
    """)
    stamp_init(a)
    make_srd(a, 20, 14, 2048*3584, WS_HH)
    make_srd(a, 24, 4, 1792*1024)
    a(f"""
    v_lshrrev_b32 v2, 4, v0          ; lane/16
    v_and_b32 v3, 15, v0             ; lane%16
    s_movk_i32 s33, 3584
    v_mul_lo_u32 v4, v2, s33
    """)
    for e in range(4):
        a(f"v_add_u32 v5, {4*e}, v2")
        a(f"v_xor_b32 v5, v3, v5")
        a(f"v_lshl_add_u32 v{6+e}, v5, 4, v4")
        if e: a(f"v_add_u32 v{6+e}, {4*e*3584}, v{6+e}")
    a(f"""
    v_lshrrev_b32 v4, 3, v0
    v_and_b32 v5, 7, v0
    v_and_b32 v10, 1, v2
    v_lshlrev_b32 v10, 2, v10
    v_xor_b32 v5, v5, v10
    v_lshlrev_b32 v5, 4, v5
    v_lshl_add_u32 v10, v4, 10, v5
    s_mul_i32 s34, s16, {64*3584}
    s_mul_i32 s35, s18, {16*3584}
    s_add_u32 s34, s34, s35
    s_lshl_b32 s35, s18, 15          ; 4w*8*1024
    s_lshl_b32 s36, s17, 7
    s_add_u32 s35, s35, s36
    s_lshl_b32 s36, s18, 12          ; lds 4w*1024
    """)
    def dma(kk):
        st = (kk % 4) * K4_STAGE
        a(f"s_add_u32 s37, s36, {st}")
        a(f"s_add_u32 s38, s34, {kk*256}")
        a(f"s_add_u32 s39, s35, {kk*128*1024}")
        for e in range(4):
            a(f"s_add_u32 m0, s37, {e*1024}")
            a(f"s_add_u32 s40, s39, {e*8192}")
            a(f"buffer_load_dwordx4 v{6+e}, s[20:23], s38 offen lds")
            a(f"s_add_u32 m0, s37, {16384+e*1024}")
            a(f"s_nop 0")
            a(f"buffer_load_dwordx4 v10, s[24:27], s40 offen lds")
    dma(0); dma(1); dma(2)
    AA = 16
    AW = 32
    a(f"""
    v_and_b32 v11, 31, v0
    v_lshrrev_b32 v12, 5, v0         ; h
    s_lshr_b32 s40, s18, 1
    s_lshl_b32 s40, s40, 5
    v_add_u32 v13, s40, v11          ; row
    v_and_b32 v14, 15, v13
    v_lshlrev_b32 v13, 8, v13        ; row*256
    """)
    for ss in range(8):
        a(f"v_add_u32 v15, {2*ss}, v12")
        a(f"v_xor_b32 v15, v15, v14")
        a(f"v_lshl_add_u32 v{AA+ss}, v15, 4, v13")
        a(f"v_add_u32 v{AA+8+ss}, 65536, v{AA+ss}")
    a(f"""
    v_lshrrev_b32 v14, 2, v3         ; li/4
    v_lshl_add_u32 v15, v12, 3, v14  ; krow
    v_and_b32 v13, 1, v2
    v_lshlrev_b32 v13, 5, v13
    v_and_b32 v34, 3, v3
    v_lshl_add_u32 v13, v34, 3, v13
    s_and_b32 s40, s18, 1
    s_lshl_b32 s40, s40, 6
    v_add_u32 v13, s40, v13          ; colbyte
    v_lshrrev_b32 v14, 1, v14
    v_lshlrev_b32 v14, 6, v14
    v_xor_b32 v13, v13, v14
    v_lshl_add_u32 v13, v15, 7, v13
    v_add_u32 v{AW}, 16384, v13
    v_add_u32 v{AW+1}, {16384+65536}, v13
    """)
    a(f"""
    s_lshl_b32 s40, s16, 6
    s_lshr_b32 s41, s18, 1
    s_lshl_b32 s41, s41, 5
    s_add_u32 s40, s40, s41
    v_add_u32 v34, s40, v11
    v_lshlrev_b32 v34, 10, v34
    v_lshl_add_u32 v34, v12, 3, v34
    s_lshl_b32 s40, s17, 7
    s_and_b32 s41, s18, 1
    s_lshl_b32 s41, s41, 6
    s_add_u32 s40, s40, s41
    v_add_u32 v34, s40, v34
    v_add_u32 v35, {WS_H}, v34
    """)
    ACC = 48
    FRG = 64
    HR = 36
    def reads(st, ss):
        f = FRG + 8*ss
        hi = st >= 2
        so = (st % 2) * K4_STAGE
        a(f"ds_read_b64_tr_b16 v[{f}:{f+1}], v{AW+hi} offset:{so+ss*2048}")
        a(f"ds_read_b64_tr_b16 v[{f+2}:{f+3}], v{AW+hi} offset:{so+ss*2048+512}")
        a(f"ds_read_b128 v[{f+4}:{f+7}], v{AA+8*hi+ss} offset:{so}")
    NK = 14
    for kk in range(NK):
        st = kk % 4
        rem = min(2, NK-1-kk)
        extra = 4 if kk >= 12 else 0
        if kk <= 11:
            a(f"s_waitcnt vmcnt({8*rem})")
        else:
            a(f"s_waitcnt vmcnt({8*rem + 4})")
        a("s_barrier")
        if kk + 3 < NK:
            dma(kk + 3)
        if kk == 11:
            for g in range(4):
                a(f"global_load_dwordx2 v[{HR+2*g}:{HR+2*g+1}], v35, s[14:15] offset:{16*g}")
        for ss in range(4):
            reads(st, ss)
        for ss in range(8):
            if ss + 4 < 8:
                reads(st, ss+4)
                a("s_waitcnt lgkmcnt(12)")
            else:
                a(f"s_waitcnt lgkmcnt({3*(7-ss)})")
            f = FRG + 8*ss
            c = "0" if (kk == 0 and ss == 0) else f"v[{ACC}:{ACC+15}]"
            a(f"v_mfma_f32_32x32x16_bf16 v[{ACC}:{ACC+15}], v[{f}:{f+3}], v[{f+4}:{f+7}], {c}")
    stamp(a)
    a("s_mov_b32 s33, 0xffff0000")
    a("s_waitcnt vmcnt(0)")
    a("s_nop 10")
    for i in range(8):
        a(f"v_cvt_pk_bf16_f32 v64, v{ACC+2*i}, v{ACC+2*i+1}")
        a(f"v_lshlrev_b32 v65, 16, v64")
        a(f"v_and_b32 v66, s33, v64")
        a(f"v_lshlrev_b32 v67, 16, v{HR+i}")
        a(f"v_and_b32 v68, s33, v{HR+i}")
        a(f"v_add_f32 v65, v65, v67")
        a(f"v_add_f32 v66, v66, v68")
        a(f"v_cvt_pk_bf16_f32 v{72+i}, v65, v66")
    for g in range(4):
        a(f"global_store_dwordx2 v34, v[{72+2*g}:{73+2*g}], s[6:7] offset:{16*g}")
    stamp(a)
    a.label("K4_END")
    a("s_endpgm")
    return name, 128, 256, 256, K4_LDS
```

```python
import sys
from common import *
from k1 import gen_k1
KERNELS = [gen_k1]
try:
    from k2 import gen_k2; KERNELS.append(gen_k2)
    from k3 import gen_k3; KERNELS.append(gen_k3)
    from k4 import gen_k4; KERNELS.append(gen_k4)
except ImportError as e:
    print("partial:", e, file=sys.stderr)

def build(path):
    ref = open("sequential_preLN__grouped_kv_mqa__glu_gated_geglu__prompt.s.ref").read()
    hdr = [l for l in ref.split("\n") if l.startswith(";") and "@launch" not in l and "Override launch" not in l and "grid=ceil" not in l]
    a = Asm()
    infos = []
    for g in KERNELS:
        infos.append(g(a))
    out = "\n".join(hdr) + "\n"
    for (name, nvgpr, grid, block, lds) in infos:
        out += f"; @launch kernel={name} grid=({grid},1,1) block=({block},1,1) lds={lds}\n"
    out += '.amdgcn_target "amdgcn-amd-amdhsa--gfx950"\n.text\n'
    out += a.text()
    out += '.section .rodata,"a"\n.p2align 6\n'
    for (name, nvgpr, grid, block, lds) in infos:
        out += kernel_desc(name, nvgpr)
        out += ".p2align 6\n"
    open(path, "w").write(out)

if __name__ == "__main__":
    build(sys.argv[1] if len(sys.argv) > 1 else "sequential_preLN__grouped_kv_mqa__glu_gated_geglu__prompt.s")
```

```python
import math, struct

class Asm:
    def __init__(self):
        self.lines = []
    def __call__(self, s):
        for l in s.strip("\n").split("\n"):
            self.lines.append("    " + l.strip())
    def label(self, l):
        self.lines.append(l + ":")
    def comment(self, c):
        self.lines.append("    ; " + c)
    def text(self):
        return "\n".join(self.lines) + "\n"

def f32bits(x):
    return struct.unpack("<I", struct.pack("<f", x))[0]

def vr(a, n=None):
    if n is None or n == 1:
        return f"v{a}"
    return f"v[{a}:{a+n-1}]"

def sr(a, n=2):
    return f"s[{a}:{a+n-1}]"

WS_Q   = 0x0000000
WS_KF  = 0x0200000
WS_VF  = 0x0210000
WS_WOT = 0x0220000
WS_H   = 0x0300000
WS_HN  = 0x0500000
WS_HH  = 0x0700000

QSCALE = 0.25 * math.log2(math.e)

def kernel_header(a, name):
    a.lines.append(f".globl {name}")
    a.lines.append(".p2align 8")
    a.lines.append(f".type {name},@function")
    a.lines.append(f"{name}:")

def kernel_desc(name, nvgpr, nsgpr=102):
    if STAMPS_ON(): nvgpr = 256
    acc = (nvgpr + 3) // 4 * 4
    return f""".amdhsa_kernel {name}
  .amdhsa_next_free_vgpr {nvgpr}
  .amdhsa_next_free_sgpr {nsgpr}
  .amdhsa_accum_offset {acc}
  .amdhsa_group_segment_fixed_size 0
  .amdhsa_kernarg_size 96
  .amdhsa_user_sgpr_count 2
  .amdhsa_user_sgpr_kernarg_segment_ptr 1
  .amdhsa_system_sgpr_workgroup_id_x 1
  .amdhsa_float_denorm_mode_32 3
.end_amdhsa_kernel
"""

def make_srd(a, d, base, nbytes, add=0):
    if add:
        a(f"s_add_u32 s{d}, s{base}, {add}")
        a(f"s_addc_u32 s{d+1}, s{base+1}, 0")
    else:
        a(f"s_mov_b32 s{d}, s{base}")
        a(f"s_mov_b32 s{d+1}, s{base+1}")
    a(f"s_mov_b32 s{d+2}, {nbytes}")
    a(f"s_mov_b32 s{d+3}, 0x00020000")

import os
STAMPS = os.environ.get("STAMPS", "") != ""
_stamp_state = {"n": 0}
def stamp_init(a):
    if not STAMPS: return
    _stamp_state["n"] = 0
    a("s_load_dwordx2 s[92:93], s[0:1], 80")
    a("s_memtime s[90:91]")
    a("s_memrealtime s[96:97]")
    a("s_waitcnt lgkmcnt(0)")
def stamp(a, wavesreg="s18"):
    if not STAMPS: return
    n = _stamp_state["n"]; _stamp_state["n"] += 1
    assert n < 32
    a("s_memtime s[94:95]")
    a("s_waitcnt lgkmcnt(0)")
    a(f"s_sub_u32 s{50+n}, s94, s90")
def stamp_flush(a, wavesreg="s18"):
    if not STAMPS: return
    n = _stamp_state["n"]
    lab = f"STAMP_SKIP_{len(a.lines)}"
    a(f"s_or_b32 s95, s2, {wavesreg}")
    a(f"s_cmp_lg_u32 s95, 0")
    a(f"s_cbranch_scc1 {lab}")
    a("v_mov_b32 v255, 0")
    for i in range(n):
        a(f"v_mov_b32 v254, s{50+i}")
        a(f"global_store_dword v255, v254, s[92:93] offset:{4*i}")
        a("s_nop 1")
    a.label(lab)
def STAMPS_ON():
    return STAMPS

TL = os.environ.get("TIMELINE", "") != ""
WS_TL = 0x2000000
def tl_start(a):
    if not TL: return
    a("s_memrealtime s[86:87]")
def tl_end(a, kidx, wavesreg="s18"):
    if not TL: return
    n = len(a.lines)
    a("s_memrealtime s[88:89]")
    a("s_waitcnt lgkmcnt(0)")
    a("s_mov_b64 exec, 1")
    a(f"s_lshl_b32 s84, s2, 3")
    a(f"s_add_u32 s84, s84, {wavesreg}")
    a(f"s_lshl_b32 s84, s84, 3")
    a(f"s_add_u32 s84, s84, {WS_TL + kidx*65536}")
    a("v_mov_b32 v0, s84")
    a("v_mov_b32 v2, s86")
    a("v_mov_b32 v3, s88")
    a("global_store_dwordx2 v0, v[2:3], s[14:15]")
```

```python
from common import *

K1_LDS_XN = 0
K1_LDS_W  = 66560
K1_LDS_KV = 66560 + 65536
K1_LDS = K1_LDS_KV + 16384

def gen_k1(a):
    name = "k1_qkv_kernel"
    kernel_header(a, name)
    tl_start(a)
    a(f"""
    s_cmp_ge_u32 s2, 256
    s_cbranch_scc1 K1_END
    s_load_dwordx8 s[4:11], s[0:1], 0
    s_load_dwordx2 s[12:13], s[0:1], 32
    s_load_dwordx2 s[14:15], s[0:1], 88
    v_lshrrev_b32 v1, 6, v0
    v_and_b32 v0, 63, v0
    s_and_b32 s16, s2, 7
    s_lshl_b32 s16, s16, 2
    s_lshr_b32 s17, s2, 6
    s_add_u32 s16, s16, s17
    s_lshr_b32 s17, s2, 3
    s_and_b32 s17, s17, 7            ; cb
    v_readfirstlane_b32 s18, v1
    v_lshrrev_b32 v2, 4, v0          ; lane/16
    v_and_b32 v3, 15, v0             ; lane%16
    s_lshl_b32 s19, s16, 6
    s_lshl_b32 s28, s18, 4
    s_add_u32 s19, s19, s28
    v_add_u32 v4, s19, v2
    v_lshlrev_b32 v4, 10, v4
    v_lshl_add_u32 v4, v3, 4, v4
    v_add_u32 v5, 4096, v4
    v_add_u32 v6, 8192, v4
    v_add_u32 v7, 12288, v4
    s_waitcnt lgkmcnt(0)
    """)
    stamp_init(a)
    vmops = []
    def vm(tag): vmops.append(tag)
    def wait_tag(tag):
        last = max(i for i, t in enumerate(vmops) if t == tag)
        a(f"s_waitcnt vmcnt({len(vmops)-1-last})")
    XR = 64
    for q in range(4):
        for j in range(4):
            a(f"global_load_dwordx4 {vr(XR+q*16+j*4,4)}, v{4+q}, s[4:5] offset:{j*256}"); vm(f"x{q}")
    make_srd(a, 20, 6, 512*1024)
    a(f"""
    s_cmp_lt_u32 s17, 4
    s_cselect_b32 s24, s8, s10
    s_cselect_b32 s25, s9, s11
    s_mov_b32 s26, 16384
    s_mov_b32 s27, 0x00020000
    """)
    a(f"""
    v_lshrrev_b32 v8, 3, v0          ; lane/8
    v_and_b32 v9, 7, v0
    v_and_b32 v10, 1, v2             ; (lane>>4)&1
    v_lshlrev_b32 v10, 2, v10
    v_xor_b32 v9, v9, v10
    v_lshlrev_b32 v9, 4, v9
    v_lshl_add_u32 v8, v8, 10, v9
    s_lshl_b32 s36, s18, 17          ; w*16*8192
    s_lshl_b32 s29, s17, 7           ; cb*128
    s_add_u32 s36, s36, s29
    s_lshl_b32 s37, s18, 14          ; w*16*1024 (lds)
    s_add_u32 s37, s37, {K1_LDS_W}
    v_lshlrev_b32 v9, 4, v0          ; lane*16
    s_lshl_b32 s38, s18, 12          ; w*4096
    s_add_u32 s39, s38, {K1_LDS_KV}
    """)
    a(f"""
    s_and_b32 s31, s18, 1
    s_lshl_b32 s30, s2, 1
    s_add_u32 s30, s30, s31          ; f
    s_lshr_b32 s31, s30, 4           ; ct
    s_and_b32 s32, s30, 15           ; ks
    s_lshl_b32 s32, s32, 15          ; 32ks*1024
    s_lshl_b32 s31, s31, 5           ; 16ct*2
    s_add_u32 s31, s31, s32
    v_lshlrev_b32 v10, 13, v2        ; 8*(lane/16)*1024
    v_lshl_add_u32 v10, v3, 1, v10
    v_add_u32 v10, s31, v10
    v_add_u32 v10, 4096, v10
    s_lshl_b32 s30, s30, 10
    s_add_u32 s30, s30, {WS_WOT}
    v_add_u32 v11, s30, v9
    """)
    pending = []
    for t in range(16):
        pending.append(("w", t))
    for t in range(4):
        pending.append(("kv", t))
    def sprinkle():
        if not pending: return
        kind, t = pending.pop(0)
        if kind == "w":
            a(f"s_add_u32 m0, s37, {t*1024}")
            a(f"s_add_u32 s28, s36, {t*8192}")
            a(f"buffer_load_dwordx4 v8, s[20:23], s28 offen lds"); vm("dma")
        else:
            a(f"s_add_u32 m0, s39, {t*1024}")
            a(f"s_add_u32 s28, s38, {t*1024}")
            a(f"buffer_load_dwordx4 v9, s[24:27], s28 offen lds"); vm("dma")
    a(f"""
    s_lshl_b32 s28, s18, 4
    v_add_u32 v16, s28, v2
    s_movk_i32 s29, 1040
    v_mul_lo_u32 v16, v16, s29
    v_lshl_add_u32 v16, v3, 4, v16
    s_mov_b32 s33, 0xffff0000
    s_mov_b32 s34, {f32bits(1.0/512)}
    s_mov_b32 s35, {f32bits(1e-5)}
    """)
    sprinkle(); sprinkle()
    F = 128
    for q in range(4):
        stamp(a)
        wait_tag(f"x{q}")
        stamp(a)
        X = XR + q*16
        for i in range(16):
            a(f"v_lshlrev_b32 v{F+2*i}, 16, v{X+i}")
            a(f"v_and_b32 v{F+2*i+1}, s33, v{X+i}")
        sprinkle()
        a(f"v_pk_add_f32 v[20:21], v[{F}:{F+1}], v[{F+2}:{F+3}]")
        a(f"v_pk_add_f32 v[22:23], v[{F+4}:{F+5}], v[{F+6}:{F+7}]")
        for i in range(2, 8):
            d = 20 if i % 2 == 0 else 22
            a(f"v_pk_add_f32 v[{d}:{d+1}], v[{d}:{d+1}], v[{F+4*i}:{F+4*i+1}]")
            a(f"v_pk_add_f32 v[{d}:{d+1}], v[{d}:{d+1}], v[{F+4*i+2}:{F+4*i+3}]")
        a("v_pk_add_f32 v[20:21], v[20:21], v[22:23]")
        a("v_add_f32 v20, v20, v21")
        for r in (8, 4, 2, 1):
            a("s_nop 1")
            a(f"v_add_f32_dpp v20, v20, v20 row_ror:{r} row_mask:0xf bank_mask:0xf")
        a(f"""
        v_mul_f32 v20, s34, v20
        v_cvt_pk_bf16_f32 v21, v20, v20
        v_lshlrev_b32 v21, 16, v21       ; m_b
        v_sub_f32 v24, v20, v21          ; mean - m_b
        """)
        sprinkle()
        for i in range(16):
            a(f"v_pk_add_f32 v[{F+2*i}:{F+2*i+1}], v[{F+2*i}:{F+2*i+1}], v[20:21] op_sel:[0,1] op_sel_hi:[1,1] neg_lo:[0,1] neg_hi:[0,1]")
        sprinkle()
        a(f"v_pk_mul_f32 v[22:23], v[{F}:{F+1}], v[{F}:{F+1}]")
        a(f"v_pk_mul_f32 v[26:27], v[{F+2}:{F+3}], v[{F+2}:{F+3}]")
        for i in range(2, 16):
            d = 22 if i % 2 == 0 else 26
            a(f"v_pk_fma_f32 v[{d}:{d+1}], v[{F+2*i}:{F+2*i+1}], v[{F+2*i}:{F+2*i+1}], v[{d}:{d+1}]")
        a("v_pk_add_f32 v[22:23], v[22:23], v[26:27]")
        a("v_add_f32 v22, v22, v23")
        for r in (8, 4, 2, 1):
            a("s_nop 1")
            a(f"v_add_f32_dpp v22, v22, v22 row_ror:{r} row_mask:0xf bank_mask:0xf")
        a(f"""
        v_mul_f32 v22, s34, v22          ; E[d^2]
        v_fma_f32 v22, -v24, v24, v22    ; var
        v_max_f32 v22, 0, v22
        v_cvt_pk_bf16_f32 v22, v22, v22
        v_lshlrev_b32 v22, 16, v22
        v_add_f32 v22, s35, v22
        v_cvt_pk_bf16_f32 v22, v22, v22
        v_lshlrev_b32 v22, 16, v22
        v_sqrt_f32 v22, v22
        s_nop 0
        v_cvt_pk_bf16_f32 v22, v22, v22
        v_lshlrev_b32 v22, 16, v22
        v_rcp_f32 v22, v22
        s_nop 0
        v_mov_b32 v23, v22
        """)
        sprinkle()
        for i in range(16):
            a(f"v_pk_mul_f32 v[{F+2*i}:{F+2*i+1}], v[{F+2*i}:{F+2*i+1}], v[22:23]")
        sprinkle()
        for i in range(16):
            a(f"v_cvt_pk_bf16_f32 v{X+i}, v{F+2*i}, v{F+2*i+1}")
        for j in range(4):
            a(f"ds_write_b128 v16, {vr(X+j*4,4)} offset:{q*4*1040 + j*256}")
    while pending: sprinkle()
    for j in range(8):
        a(f"global_load_ushort v{48+j}, v10, s[12:13] offset:{j*1024-4096}"); vm("wo")
    stamp(a)
    a(f"""
    s_lshr_b32 s28, s18, 1
    s_lshl_b32 s28, s28, 5           ; 32mi
    v_and_b32 v17, 31, v0
    v_add_u32 v17, s28, v17
    v_mul_lo_u32 v17, v17, s29
    v_lshrrev_b32 v18, 5, v0
    v_lshl_add_u32 v17, v18, 4, v17
    v_lshrrev_b32 v19, 2, v3         ; li/4
    v_lshl_add_u32 v18, v18, 3, v19
    v_and_b32 v20, 1, v2             ; G%2
    v_lshlrev_b32 v20, 5, v20        ; *16*2
    v_and_b32 v21, 3, v3
    v_lshl_add_u32 v20, v21, 3, v20  ; + (li%4)*8
    s_and_b32 s28, s18, 1
    s_lshl_b32 s28, s28, 6
    v_add_u32 v20, s28, v20          ; + 32ni*2
    v_lshrrev_b32 v21, 1, v19
    v_lshlrev_b32 v21, 6, v21
    v_xor_b32 v20, v20, v21
    v_lshl_add_u32 v18, v18, 7, v20
    v_add_u32 v18, {K1_LDS_W}, v18
    """)
    wait_tag("dma")
    a("s_waitcnt lgkmcnt(0)")
    a("s_barrier")
    stamp(a)
    ACC = 32
    def rd(ks):
        s = ks % 4
        a(f"ds_read_b64_tr_b16 v[{64+8*s}:{65+8*s}], v18 offset:{ks*2048}")
        a(f"ds_read_b64_tr_b16 v[{66+8*s}:{67+8*s}], v18 offset:{ks*2048+512}")
        a(f"ds_read_b128 v[{68+8*s}:{71+8*s}], v17 offset:{ks*32}")
    for ks in range(4):
        rd(ks)
    for ks in range(32):
        s = ks % 4
        rem = min(3, 31 - ks)
        a(f"s_waitcnt lgkmcnt({3*rem})")
        c = "0" if ks == 0 else vr(ACC, 16)
        a(f"v_mfma_f32_32x32x16_bf16 {vr(ACC,16)}, v[{64+8*s}:{67+8*s}], v[{68+8*s}:{71+8*s}], {c}")
        if ks + 4 < 32:
            rd(ks + 4)
    stamp(a)
    a(f"""
    s_lshl_b32 s28, s16, 6           ; 64rb
    s_lshr_b32 s30, s18, 1
    s_lshl_b32 s30, s30, 5
    s_add_u32 s28, s28, s30
    v_and_b32 v20, 31, v0
    v_add_u32 v20, s28, v20
    v_lshlrev_b32 v20, 10, v20       ; row*1024
    v_lshrrev_b32 v21, 5, v0
    v_lshl_add_u32 v20, v21, 3, v20  ; + 4*(l/32)*2
    s_lshl_b32 s28, s17, 7           ; 64cb*2
    s_and_b32 s30, s18, 1
    s_lshl_b32 s30, s30, 6
    s_add_u32 s28, s28, s30
    v_add_u32 v20, s28, v20
    s_mov_b32 s31, {f32bits(QSCALE)}
    s_waitcnt vmcnt(0)
    s_cmp_ge_u32 s18, 2
    s_cbranch_scc1 K1_NOWO2
    v_lshl_or_b32 v12, v49, 16, v48
    v_lshl_or_b32 v13, v51, 16, v50
    v_lshl_or_b32 v14, v53, 16, v52
    v_lshl_or_b32 v15, v55, 16, v54
    global_store_dwordx4 v11, v[12:15], s[14:15]
    K1_NOWO2:
    s_nop 7
    """)
    for r in range(16):
        a(f"v_mul_f32 v{ACC+r}, s31, v{ACC+r}")
    for g in range(4):
        a(f"v_cvt_pk_bf16_f32 v{56+2*g}, v{ACC+4*g}, v{ACC+4*g+1}")
        a(f"v_cvt_pk_bf16_f32 v{57+2*g}, v{ACC+4*g+2}, v{ACC+4*g+3}")
    for g in range(4):
        a(f"global_store_dwordx2 v20, v[{56+2*g}:{57+2*g}], s[14:15] offset:{16*g}")
    stamp(a)
    stamp_flush(a)
    a(f"""
    s_cmp_lg_u32 s18, 3
    s_cbranch_scc1 K1_FIN
    s_and_b32 s28, s17, 3
    s_lshl_b32 s28, s28, 4           ; 16*(cb&3)
    v_add_u32 v17, s28, v3
    v_mul_lo_u32 v17, v17, s29
    v_lshl_add_u32 v17, v2, 4, v17
    v_lshrrev_b32 v19, 2, v3         ; li/4
    v_lshl_add_u32 v18, v2, 3, v19
    v_lshlrev_b32 v18, 5, v18        ; *32B
    v_and_b32 v21, 3, v3
    v_lshl_add_u32 v18, v21, 3, v18
    v_add_u32 v18, {K1_LDS_KV}, v18
    """)
    def rd2(ks):
        s = ks % 4
        a(f"ds_read_b64_tr_b16 v[{64+8*s}:{65+8*s}], v18 offset:{ks*1024}")
        a(f"ds_read_b64_tr_b16 v[{66+8*s}:{67+8*s}], v18 offset:{ks*1024+128}")
        a(f"ds_read_b128 v[{68+8*s}:{71+8*s}], v17 offset:{ks*64}")
    for isv in (0, 1):
        if isv == 0:
            a("s_cmp_ge_u32 s17, 4")
            a("s_cbranch_scc1 K1_V")
        else:
            a.label("K1_V")
        for ks in range(4):
            rd2(ks)
        for ks in range(16):
            s = ks % 4
            rem = min(3, 15 - ks)
            a(f"s_waitcnt lgkmcnt({3*rem})")
            c = "0" if ks == 0 else "v[32:35]"
            W = f"v[{64+8*s}:{67+8*s}]"; X = f"v[{68+8*s}:{71+8*s}]"
            if isv == 0:
                a(f"v_mfma_f32_16x16x32_bf16 v[32:35], {W}, {X}, {c}")
            else:
                a(f"v_mfma_f32_16x16x32_bf16 v[32:35], {X}, {W}, {c}")
            if ks + 4 < 16:
                rd2(ks + 4)
        if isv == 0:
            a(f"""
            s_lshl_b32 s30, s16, 6
            s_add_u32 s30, s30, s28
            v_add_u32 v20, s30, v3           ; key
            v_lshrrev_b32 v21, 5, v20
            v_lshlrev_b32 v21, 10, v21
            v_and_b32 v20, 31, v20
            v_lshl_add_u32 v20, v20, 4, v21
            v_lshrrev_b32 v21, 1, v2
            v_lshl_add_u32 v20, v21, 9, v20
            v_and_b32 v21, 1, v2
            v_lshl_add_u32 v20, v21, 3, v20
            v_add_u32 v20, {WS_KF}, v20
            """)
        else:
            a(f"""
            s_lshl_b32 s30, s16, 2
            s_and_b32 s31, s17, 3
            s_add_u32 s30, s30, s31
            s_lshl_b32 s30, s30, 9
            s_add_u32 s30, s30, {WS_VF}
            v_lshlrev_b32 v20, 4, v3
            v_and_b32 v21, 1, v2
            v_lshl_add_u32 v20, v21, 8, v20
            v_lshrrev_b32 v21, 1, v2
            v_lshl_add_u32 v20, v21, 3, v20
            v_add_u32 v20, s30, v20
            """)
        a(f"""
        s_nop 4
        v_cvt_pk_bf16_f32 v36, v32, v33
        v_cvt_pk_bf16_f32 v37, v34, v35
        global_store_dwordx2 v20, v[36:37], s[14:15]
        s_branch K1_FIN
        """)
    a.label("K1_FIN")
    tl_end(a, 0)
    a.label("K1_END")
    a("s_endpgm")
    return name, 160, 256, 256, K1_LDS
```

```python
from common import *

K2_LDS_K = 0
K2_LDS_V = 65536
K2_LDS_O = 131072
K2_LDS_ST = 131072 + 8320
K2_LDS = K2_LDS_ST + 2048
BIAS = 40.0

Q = 4; NM = 16; S0 = 32; S1 = 48; P = 64; O = 72; KB = (88, 92); VB = (96, 104)
AK = 112; AV = 113; AK2 = 14; AV2 = 15; P2 = 120
WOP = 128

def gen_k2(a):
    name = "k2_attn_kernel"
    kernel_header(a, name)
    tl_start(a)
    a(f"""
    s_cmp_ge_u32 s2, 256
    s_cbranch_scc1 K2_END
    s_load_dwordx2 s[4:5], s[0:1], 0       ; x
    s_load_dwordx4 s[8:11], s[0:1], 48
    s_load_dwordx2 s[12:13], s[0:1], 64    ; w_down
    s_load_dwordx2 s[14:15], s[0:1], 88    ; ws
    v_lshrrev_b32 v1, 6, v0
    v_and_b32 v0, 63, v0
    s_and_b32 s16, s2, 7
    s_lshl_b32 s16, s16, 5
    s_lshr_b32 s17, s2, 3
    s_add_u32 s16, s16, s17
    s_lshl_b32 s16, s16, 3           ; row0
    v_readfirstlane_b32 s18, v1
    s_mov_b32 s40, 0
    s_waitcnt lgkmcnt(0)
    """)
    stamp_init(a)
    make_srd(a, 20, 14, 131072, WS_KF)
    a(f"""
    v_and_b32 v2, 7, v0              ; r
    v_bfe_u32 v3, v0, 3, 2           ; hl
    v_lshrrev_b32 v8, 5, v0          ; l/32
    v_add_u32 v9, s16, v2
    v_lshlrev_b32 v9, 10, v9
    v_lshl_add_u32 v9, v3, 5, v9
    v_lshl_add_u32 v9, v8, 4, v9
    s_lshl_b32 s19, s18, 7           ; 4w*32
    v_add_u32 v9, s19, v9
    global_load_dwordx4 v[{Q}:{Q+3}], v9, s[14:15]
    v_lshlrev_b32 v{AK}, 4, v0       ; lane*16
    """)
    a("s_lshl_b32 s48, s18, 11          ; 2w*1024")
    def kvdma(idx):
        c = idx // 4; kv = (idx // 2) % 2; i = idx % 2
        off = c*16*1024 + i*1024 + kv*65536
        a(f"s_add_u32 s29, s48, {off}")
        a(f"s_mov_b32 m0, s29")
        a(f"s_nop 0")
        a(f"buffer_load_dwordx4 v{AK}, s[20:23], s29 offen lds")
    for idx in range(4):
        kvdma(idx)
    a(f"""
    v_and_b32 v10, 15, v0
    v_lshlrev_b32 v10, 4, v10
    v_lshl_add_u32 v{AV}, v8, 8, v10
    v_add_u32 v{AV}, {K2_LDS_V}, v{AV}
    v_and_b32 v10, 27, v0            ; l%32 with bit2 cleared : 16 and 20 -> 16
    v_and_b32 v10, 31, v10
    v_cmp_eq_u32 vcc, 16, v10
    v_mov_b32 v11, 0x3f803f80
    s_mov_b32 s42, 0xffff
    s_mov_b32 s43, 0xffff
    s_nop 1
    v_cndmask_b32 v11, 0, v11, vcc
    """)
    for i in range(16):
        a(f"v_mov_b32 v{VB[0]+i}, v11")
    a(f"""
    s_waitcnt vmcnt(0)
    s_barrier
    ds_read_b128 v[{KB[0]}:{KB[0]+3}], v{AK}
    s_waitcnt lgkmcnt(0)
    v_mfma_f32_32x32x16_bf16 v[{S0}:{S0+15}], v[{KB[0]}:{KB[0]+3}], v[{Q}:{Q+3}], 0
    s_nop 15
    v_max3_f32 v10, v{S0}, v{S0+1}, v{S0+2}
    """)
    for i in range(3, 15, 2):
        a(f"v_max3_f32 v10, v10, v{S0+i}, v{S0+i+1}")
    a(f"""
    v_max_f32 v10, v10, v{S0+15}
    v_mov_b32 v11, v10
    s_nop 1
    v_permlane32_swap_b32 v10, v11
    s_mov_b32 s44, {f32bits(BIAS)}
    v_max_f32 v10, v10, v11
    v_add_f32 v10, s44, v10
    v_sub_f32 v10, 0, v10
    """)
    stamp(a)
    a.label("K2_RESTART")
    for i in range(16):
        a(f"v_mov_b32 v{NM+i}, v10")
    a(f"""
    ds_read_b128 v[{KB[0]}:{KB[0]+3}], v{AK}
    ds_read_b128 v[{KB[1]}:{KB[1]+3}], v{AK} offset:1024
    s_mov_b64 exec, s[42:43]
    ds_read_b128 v[{VB[0]}:{VB[0]+3}], v{AV}
    ds_read_b128 v[{VB[0]+4}:{VB[0]+7}], v{AV} offset:512
    s_mov_b64 exec, -1
    s_lshl_b32 s28, s18, 16          ; 4w*16*1024
    s_add_u32 s28, s28, {WS_WOT + 4096}
    v_add_u32 v114, s28, v{AK}
    v_add_u32 v115, 16384, v114
    v_add_u32 v116, 32768, v114
    v_add_u32 v117, 49152, v114
    s_lshl_b32 s28, s2, 3
    s_add_u32 s28, s28, s18
    s_min_u32 s28, s28, 1791
    s_lshl_b32 s28, s28, 10
    v_add_u32 v{AK2}, s28, v{AK}
    s_waitcnt lgkmcnt(0)
    v_mfma_f32_32x32x16_bf16 v[{S0}:{S0+15}], v[{KB[0]}:{KB[0]+3}], v[{Q}:{Q+3}], v[{NM}:{NM+15}]
    s_nop 7
    """)
    NT = 64
    for t in range(NT):
        S = S0 if t % 2 == 0 else S1
        Sn = S1 if t % 2 == 0 else S0
        Kn = KB[(t+1) % 2]; Knn = KB[t % 2]
        Vc = VB[t % 2]; Vn = VB[(t+1) % 2]
        Pc = P if t % 2 == 0 else P2
        Pp = P2 if t % 2 == 0 else P
        E = lambda x, y: [a(f"v_exp_f32 v{S+i}, v{S+i}") for i in range(x, y)]
        C = lambda x, y: [a(f"v_cvt_pk_bf16_f32 v{Pc+i}, v{S+2*i}, v{S+2*i+1}") for i in range(x, y)]
        if t == 14:
            a(f"""
            s_cmp_lg_u32 s40, 0
            s_cbranch_scc1 K2_SKIPBAR
            s_waitcnt vmcnt(0)
            s_barrier
            K2_SKIPBAR:
            """)
        if t + 1 < NT:
            a(f"v_mfma_f32_32x32x16_bf16 v[{Sn}:{Sn+15}], v[{Kn}:{Kn+3}], v[{Q}:{Q+3}], v[{NM}:{NM+15}]")
        if t + 2 < NT:
            a(f"ds_read_b128 v[{Knn}:{Knn+3}], v{AK} offset:{(t+2)*1024}")
        E(0, 5)
        if t > 0:
            a(f"v_mfma_f32_32x32x16_bf16 v[{O}:{O+15}], v[{Vn+4}:{Vn+7}], v[{Pp+4}:{Pp+7}], v[{O}:{O+15}]")
        if t + 1 < NT:
            a(f"s_mov_b64 exec, s[42:43]")
            a(f"ds_read_b128 v[{Vn}:{Vn+3}], v{AV} offset:{(t+1)*1024}")
            a(f"ds_read_b128 v[{Vn+4}:{Vn+7}], v{AV} offset:{(t+1)*1024+512}")
            a(f"s_mov_b64 exec, -1")
        E(5, 8); C(0, 4); E(8, 10)
        c = "0" if t == 0 else f"v[{O}:{O+15}]"
        a(f"v_mfma_f32_32x32x16_bf16 v[{O}:{O+15}], v[{Vc}:{Vc+3}], v[{Pc}:{Pc+3}], {c}")
        E(10, 13)
        if t < 12:
            kvdma(4 + t)
        if 16 <= t < 19:
            a(f"global_load_dwordx4 v[128:131], v{AK2}, s[{8+2*(t-16)}:{9+2*(t-16)}]")
        if 24 <= t < 56:
            j = t - 24; ks = j // 4; tt = j % 4
            r = WOP + (ks*4+tt)*4
            a(f"global_load_dwordx4 v[{r}:{r+3}], v{114+tt}, s[14:15] offset:{ks*1024-4096}")
        E(13, 16); C(4, 8)
        a("s_waitcnt lgkmcnt(0)")
    a("s_nop 0")
    a(f"v_mfma_f32_32x32x16_bf16 v[{O}:{O+15}], v[{VB[1]+4}:{VB[1]+7}], v[{P2+4}:{P2+7}], v[{O}:{O+15}]")
    stamp(a)
    a(f"""
    s_mov_b32 s45, {f32bits(4096.0)}
    s_nop 15
    v_cmp_ngt_f32 vcc, s45, v{O+8}       ; !(4096 > l)
    s_cmp_lg_u32 s40, 0
    s_cbranch_scc1 K2_OK
    s_cbranch_vccz K2_OK
    """)
    a(f"""
    s_mov_b32 s40, 1
    v_mov_b32 v10, 0xff800000
    v_mov_b32 v11, v{AK}
    s_mov_b32 s46, 0
    K2_MAXLOOP:
    ds_read_b128 v[{KB[0]}:{KB[0]+3}], v11
    s_waitcnt lgkmcnt(0)
    v_mfma_f32_32x32x16_bf16 v[{S0}:{S0+15}], v[{KB[0]}:{KB[0]+3}], v[{Q}:{Q+3}], 0
    s_nop 15
    """)
    for i in range(0, 16, 2):
        a(f"v_max3_f32 v10, v10, v{S0+i}, v{S0+i+1}")
    a(f"""
    v_add_u32 v11, 1024, v11
    s_add_u32 s46, s46, 1
    s_cmp_lt_u32 s46, 64
    s_cbranch_scc1 K2_MAXLOOP
    v_mov_b32 v11, v10
    s_nop 1
    v_permlane32_swap_b32 v10, v11
    s_nop 0
    v_max_f32 v10, v10, v11
    v_sub_f32 v10, 0, v10
    s_branch K2_RESTART
    K2_OK:
    """)
    slotsA = [16 + 4*i for i in range(14)] + [88, 92]
    BF = (96, 100, 104, 108)
    a(f"""
    v_add_u32 v114, 8192, v114
    v_add_u32 v115, 8192, v115
    v_add_u32 v116, 8192, v116
    v_add_u32 v117, 8192, v117
    """)
    for ks in range(8, 12):
        for tt in range(4):
            r = slotsA[(ks-8)*4+tt]
            a(f"global_load_dwordx4 v[{r}:{r+3}], v{114+tt}, s[14:15] offset:{(ks-12)*1024}")
    a(f"""
    v_lshrrev_b32 v12, 4, v0             ; l/16
    v_add_u32 v13, s16, v2               ; row0 + l%8
    v_lshlrev_b32 v13, 10, v13
    v_lshl_add_u32 v13, v12, 3, v13
    v_add_u32 v13, s19, v13              ; + 64w*2   (s19 = w*128)
    global_load_dwordx2 v[122:123], v13, s[4:5]
    global_load_dwordx2 v[124:125], v13, s[4:5] offset:32
    global_load_dwordx2 v[126:127], v13, s[4:5] offset:64
    global_load_dwordx2 v[118:119], v13, s[4:5] offset:96
    """)
    a(f"""
    v_rcp_f32 v10, v{O+8}
    s_movk_i32 s29, 1040
    v_mul_lo_u32 v11, v2, s29            ; row*1040
    v_lshl_add_u32 v11, v3, 5, v11       ; + hl*32
    v_lshl_add_u32 v11, v8, 3, v11       ; + 4h'*2
    v_add_u32 v11, s19, v11              ; + 4w*32
    v_add_u32 v11, {K2_LDS_O}, v11
    """)
    for i in range(8):
        a(f"v_mul_f32 v{O+i}, v{O+i}, v10")
    for i in range(4):
        a(f"v_cvt_pk_bf16_f32 v{O+i}, v{O+2*i}, v{O+2*i+1}")
    a(f"""
    ds_write_b64 v11, v[{O}:{O+1}]
    ds_write_b64 v11, v[{O+2}:{O+3}] offset:16
    v_mul_lo_u32 v11, v2, s29
    v_lshl_add_u32 v11, v12, 4, v11      ; (l%8)*1040 + (l/16)*16
    v_add_u32 v11, {K2_LDS_O}, v11
    s_waitcnt lgkmcnt(0)
    s_barrier
    """)
    stamp(a)
    ACC = 72
    def frag(ks, tt):
        if ks < 8: return WOP + (ks*4+tt)*4
        if ks < 12: return slotsA[(ks-8)*4+tt]
        return WOP + ((ks-12)*4+tt)*4
    for ks in range(4):
        a(f"ds_read_b128 v[{BF[ks]}:{BF[ks]+3}], v11 offset:{ks*64}")
    for ks in range(16):
        b = BF[ks % 4]
        if ks == 0:
            a("s_waitcnt vmcnt(20)")
        if ks == 8:
            a("s_waitcnt vmcnt(20)")
        if ks == 12:
            a("s_waitcnt vmcnt(0)")
        rem = min(3, 15 - ks)
        a(f"s_waitcnt lgkmcnt({rem})")
        for tt in range(4):
            f = frag(ks, tt)
            c = "0" if ks == 0 else f"v[{ACC+4*tt}:{ACC+4*tt+3}]"
            a(f"v_mfma_f32_16x16x32_bf16 v[{ACC+4*tt}:{ACC+4*tt+3}], v[{f}:{f+3}], v[{b}:{b+3}], {c}")
        if ks + 4 < 16:
            a(f"ds_read_b128 v[{b}:{b+3}], v11 offset:{(ks+4)*64}")
        if ks == 3:
            for k2 in range(12, 16):
                for tt in range(4):
                    r = frag(k2, tt)
                    a(f"global_load_dwordx4 v[{r}:{r+3}], v{114+tt}, s[14:15] offset:{(k2-12)*1024}")
    stamp(a)
    XR = [122, 124, 126, 118]
    H = 16
    a("s_mov_b32 s33, 0xffff0000")
    a("s_nop 7")
    for tt in range(4):
        for pr in range(2):
            A0 = ACC + 4*tt + 2*pr
            a(f"v_cvt_pk_bf16_f32 v40, v{A0}, v{A0+1}")
            a(f"v_lshlrev_b32 v41, 16, v40")
            a(f"v_and_b32 v42, s33, v40")
            a(f"v_lshlrev_b32 v43, 16, v{XR[tt]+pr}")
            a(f"v_and_b32 v44, s33, v{XR[tt]+pr}")
            a(f"v_add_f32 v41, v41, v43")
            a(f"v_add_f32 v42, v42, v44")
            a(f"v_cvt_pk_bf16_f32 v{32+2*tt+pr}, v41, v42")
            a(f"v_lshlrev_b32 v{H+4*tt+2*pr}, 16, v{32+2*tt+pr}")
            a(f"v_and_b32 v{H+4*tt+2*pr+1}, s33, v{32+2*tt+pr}")
    a(f"v_add_f32 v40, v{H}, v{H+1}")
    for i in range(2, 16):
        a(f"v_add_f32 v40, v40, v{H+i}")
    a(f"""
    v_lshlrev_b32 v45, 7, v2
    v_lshl_add_u32 v45, v12, 2, v45
    s_lshl_b32 s28, s18, 4
    v_add_u32 v45, s28, v45
    v_add_u32 v45, {K2_LDS_ST}, v45
    v_lshlrev_b32 v46, 7, v2
    v_add_u32 v46, {K2_LDS_ST}, v46
    ds_write_b32 v45, v40
    s_mov_b32 s34, {f32bits(1.0/512)}
    s_mov_b32 s35, {f32bits(1e-5)}
    s_waitcnt lgkmcnt(0)
    s_barrier
    """)
    def read_sum(off, dst):
        for i in range(8):
            a(f"ds_read_b128 v[{48+4*i}:{51+4*i}], v46 offset:{off+16*i}")
        a("s_waitcnt lgkmcnt(0)")
        a(f"v_add_f32 v{dst}, v48, v49")
        for i in range(2, 32):
            a(f"v_add_f32 v{dst}, v{dst}, v{48+i}")
    read_sum(0, 40)
    a(f"""
    v_mul_f32 v40, s34, v40              ; mean
    v_cvt_pk_bf16_f32 v41, v40, v40
    v_lshlrev_b32 v41, 16, v41           ; m_b
    v_sub_f32 v42, v40, v41
    """)
    for i in range(16):
        a(f"v_sub_f32 v{H+i}, v{H+i}, v41")
    a(f"v_mul_f32 v43, v{H}, v{H}")
    for i in range(1, 16):
        a(f"v_fmac_f32 v43, v{H+i}, v{H+i}")
    a(f"""
    ds_write_b32 v45, v43 offset:1024
    s_waitcnt lgkmcnt(0)
    s_barrier
    """)
    read_sum(1024, 43)
    a(f"""
    v_mul_f32 v43, s34, v43
    v_fma_f32 v43, -v42, v42, v43
    v_max_f32 v43, 0, v43
    v_cvt_pk_bf16_f32 v43, v43, v43
    v_lshlrev_b32 v43, 16, v43
    v_add_f32 v43, s35, v43
    v_cvt_pk_bf16_f32 v43, v43, v43
    v_lshlrev_b32 v43, 16, v43
    v_sqrt_f32 v43, v43
    s_nop 0
    v_cvt_pk_bf16_f32 v43, v43, v43
    v_lshlrev_b32 v43, 16, v43
    v_rcp_f32 v43, v43
    s_nop 0
    """)
    for i in range(16):
        a(f"v_mul_f32 v{H+i}, v{H+i}, v43")
    for i in range(8):
        a(f"v_cvt_pk_bf16_f32 v{48+i}, v{H+2*i}, v{H+2*i+1}")
    a(f"""
    s_mov_b32 s42, 0x00ff00ff
    s_mov_b32 s43, 0x00ff00ff
    v_add_u32 v14, {WS_H}, v13
    v_add_u32 v15, {WS_HN}, v13
    s_mov_b64 exec, s[42:43]
    """)
    for tt in range(4):
        a(f"global_store_dwordx2 v14, v[{32+2*tt}:{33+2*tt}], s[14:15] offset:{32*tt}")
        a(f"global_store_dwordx2 v15, v[{48+2*tt}:{49+2*tt}], s[14:15] offset:{32*tt}")
    stamp(a)
    tl_end(a, 1)
    stamp_flush(a)
    a.label("K2_END")
    a("s_endpgm")
    return name, 256, 256, 512, K2_LDS
```

```python
from common import *

K3_STAGE = 49152
K3_LDS = 3 * K3_STAGE
GELU_C = -2.0 * math.sqrt(2.0/math.pi) * math.log2(math.e)

DMAPOS = [0, 2, 5, 7, 10, 12]

def gen_k3(a):
    name = "k3_ffn_up_kernel"
    kernel_header(a, name)
    tl_start(a)
    a(f"""
    s_cmp_ge_u32 s2, 224
    s_cbranch_scc1 K3_END
    s_load_dwordx4 s[4:7], s[0:1], 48
    s_load_dwordx2 s[14:15], s[0:1], 88    ; ws
    v_lshrrev_b32 v1, 6, v0
    v_and_b32 v0, 63, v0
    s_and_b32 s16, s2, 7
    s_lshl_b32 s16, s16, 1           ; 2*xcd
    s_lshr_b32 s17, s2, 3            ; idx 0..27
    s_cmp_ge_u32 s17, 14
    s_cselect_b32 s19, 1, 0
    s_add_u32 s16, s16, s19          ; mb
    s_mul_i32 s19, s19, 14
    s_sub_u32 s17, s17, s19          ; fb
    v_readfirstlane_b32 s18, v1
    s_waitcnt lgkmcnt(0)
    """)
    stamp_init(a)
    make_srd(a, 20, 14, 2048*1024, WS_HN)
    make_srd(a, 24, 4, 512*3584)
    make_srd(a, 28, 6, 512*3584)
    a(f"""
    v_lshrrev_b32 v2, 4, v0          ; lane/16
    v_and_b32 v3, 15, v0             ; lane%16
    v_lshrrev_b32 v4, 3, v0          ; lane/8
    v_and_b32 v5, 7, v0              ; lane%8
    v_xor_b32 v6, v5, v2             ; e=0
    v_lshlrev_b32 v6, 4, v6
    v_lshl_add_u32 v6, v4, 10, v6    ; A voff e=0
    v_add_u32 v7, 4, v2
    v_and_b32 v7, 7, v7
    v_xor_b32 v7, v5, v7
    v_lshlrev_b32 v7, 4, v7
    v_lshl_add_u32 v7, v4, 10, v7
    v_add_u32 v7, 8192, v7
    v_lshlrev_b32 v8, 2, v2
    v_xor_b32 v8, v3, v8
    v_lshlrev_b32 v8, 4, v8
    s_movk_i32 s33, 3584
    v_mul_lo_u32 v9, v2, s33
    v_add_u32 v8, v8, v9             ; G voff e=0
    v_add_u32 v9, {4*3584}, v8       ; G voff e=1
    s_lshl_b32 s34, s16, 17
    s_lshl_b32 s35, s18, 14          ; 2w*8*1024
    s_add_u32 s34, s34, s35
    s_mul_i32 s35, s18, {8*3584}     ; 2w*4*3584
    s_lshl_b32 s36, s17, 8
    s_add_u32 s35, s35, s36
    s_lshl_b32 s36, s18, 11          ; lds: 2w*1024
    """)
    def dma_piece(kk, p):
        st = (kk % 3) * K3_STAGE
        ldsoff = st + (0, 1024, 16384, 16384+1024, 32768, 32768+1024)[p]
        a(f"s_add_u32 m0, s36, {ldsoff}")
        if p < 2:
            a(f"s_add_u32 s38, s34, {kk*128}")
            a(f"buffer_load_dwordx4 v{6+p}, s[20:23], s38 offen lds")
        else:
            a(f"s_add_u32 s39, s35, {kk*64*3584}")
            srd = "s[24:27]" if p < 4 else "s[28:31]"
            a(f"buffer_load_dwordx4 v{8+(p&1)}, {srd}, s39 offen lds")
    def dma(kk):
        for p in range(6):
            dma_piece(kk, p)
    dma(0); dma(1)
    AA = 16
    AW = 28
    a(f"""
    v_and_b32 v10, 31, v0
    v_lshrrev_b32 v11, 5, v0         ; h
    s_lshr_b32 s40, s18, 2
    s_lshl_b32 s40, s40, 6
    v_add_u32 v12, s40, v10
    v_lshlrev_b32 v12, 7, v12        ; row*128
    v_bfe_u32 v13, v10, 1, 3         ; x
    """)
    for ss in range(4):
        a(f"v_add_u32 v14, {2*ss}, v11")
        a(f"v_xor_b32 v14, v14, v13")
        a(f"v_lshl_add_u32 v{AA+ss}, v14, 4, v12")
        a(f"v_add_u32 v{AA+4+ss}, {K3_STAGE}, v{AA+ss}")
        a(f"v_add_u32 v{AA+8+ss}, {2*K3_STAGE}, v{AA+ss}")
    a(f"""
    v_lshrrev_b32 v14, 2, v3         ; li/4
    v_lshl_add_u32 v15, v11, 3, v14  ; krow
    v_and_b32 v10, 1, v2             ; G%2
    v_lshlrev_b32 v10, 5, v10
    v_and_b32 v12, 3, v3
    v_lshl_add_u32 v10, v12, 3, v10
    s_and_b32 s40, s18, 3
    s_lshl_b32 s40, s40, 6
    v_add_u32 v10, s40, v10          ; colbyte
    v_lshlrev_b32 v14, 6, v14        ; (li/4)<<2 <<4
    v_xor_b32 v10, v10, v14
    v_lshl_add_u32 v10, v15, 8, v10
    v_add_u32 v{AW}, 16384, v10
    v_add_u32 v{AW+1}, {16384+K3_STAGE}, v10
    v_add_u32 v{AW+2}, {16384+2*K3_STAGE}, v10
    """)
    ACG = 64; ACU = 96
    FR = (32, 48)
    def reads(st, ss, fs):
        f = FR[fs]
        a(f"ds_read_b64_tr_b16 v[{f}:{f+1}], v{AW+st} offset:{ss*4096}")
        a(f"ds_read_b64_tr_b16 v[{f+2}:{f+3}], v{AW+st} offset:{ss*4096+1024}")
        a(f"ds_read_b128 v[{f+8}:{f+11}], v{AA+4*st+ss}")
        a(f"ds_read_b64_tr_b16 v[{f+4}:{f+5}], v{AW+st} offset:{16384+ss*4096}")
        a(f"ds_read_b64_tr_b16 v[{f+6}:{f+7}], v{AW+st} offset:{16384+ss*4096+1024}")
        a(f"ds_read_b128 v[{f+12}:{f+15}], v{AA+4*st+ss} offset:4096")
    NK = 8
    for kk in range(NK):
        st = kk % 3
        stamp(a)
        a(f"s_waitcnt vmcnt({6 if kk+1 < NK else 0})")
        stamp(a)
        a("s_barrier")
        reads(st, 0, 0)
        mcount = 0
        for ss in range(4):
            fs = ss % 2
            if ss < 3:
                reads(st, ss+1, 1-fs)
                a("s_waitcnt lgkmcnt(6)")
            else:
                a("s_waitcnt lgkmcnt(0)")
            f = FR[fs]
            first = (kk == 0 and ss == 0)
            for mt in range(2):
                for (acc, wf) in ((ACG, f), (ACU, f+4)):
                    A = acc + 16*mt
                    c = "0" if first else f"v[{A}:{A+15}]"
                    a(f"v_mfma_f32_32x32x16_bf16 v[{A}:{A+15}], v[{wf}:{wf+3}], v[{f+8+4*mt}:{f+11+4*mt}], {c}")
                    if kk + 2 < NK and mcount in DMAPOS:
                        dma_piece(kk + 2, DMAPOS.index(mcount))
                    mcount += 1
    stamp(a)
    a(f"""
    v_and_b32 v10, 31, v0
    s_lshl_b32 s40, s16, 7
    s_lshr_b32 s41, s18, 2
    s_lshl_b32 s41, s41, 6
    s_add_u32 s40, s40, s41
    v_add_u32 v10, s40, v10
    v_mul_lo_u32 v10, v10, s33       ; row*3584
    v_lshl_add_u32 v10, v11, 3, v10
    s_lshl_b32 s40, s17, 8
    s_and_b32 s41, s18, 3
    s_lshl_b32 s41, s41, 6
    s_add_u32 s40, s40, s41
    s_add_u32 s40, s40, {WS_HH}
    v_add_u32 v10, s40, v10
    v_add_u32 v12, {32*3584}, v10
    s_mov_b32 s42, {f32bits(GELU_C)}
    s_mov_b32 s43, {f32bits(GELU_C*0.044715)}
    v_mov_b32 v13, s42
    s_nop 4
    """)
    T = 32
    for mt in range(2):
        G = ACG + 16*mt; U = ACU + 16*mt
        for r in range(16):
            a(f"v_mul_f32 v{T+r}, v{G+r}, v{G+r}")
        for r in range(16):
            a(f"v_fma_f32 v{T+r}, v{T+r}, s43, v13")
        for r in range(16):
            a(f"v_mul_f32 v{T+r}, v{T+r}, v{G+r}")
        for r in range(16):
            a(f"v_exp_f32 v{T+r}, v{T+r}")
        for r in range(16):
            a(f"v_add_f32 v{T+r}, 1.0, v{T+r}")
        for r in range(16):
            a(f"v_rcp_f32 v{T+r}, v{T+r}")
        for r in range(16):
            a(f"v_mul_f32 v{G+r}, v{G+r}, v{U+r}")
        for r in range(16):
            a(f"v_mul_f32 v{T+r}, v{T+r}, v{G+r}")
        for i in range(8):
            a(f"v_cvt_pk_bf16_f32 v{T+16+i}, v{T+2*i}, v{T+2*i+1}")
        for g in range(4):
            a(f"global_store_dwordx2 v{10+2*mt}, v[{T+16+2*g}:{T+17+2*g}], s[14:15] offset:{16*g}")
        a("s_nop 1")
    stamp(a)
    tl_end(a, 2)
    stamp_flush(a)
    a.label("K3_END")
    a("s_endpgm")
    return name, 128, 224, 512, K3_LDS
```

```python
from common import *

K4_STAGE = 32768
K4_LDS = 4 * K4_STAGE

def gen_k4(a):
    name = "k4_ffn_down_kernel"
    kernel_header(a, name)
    tl_start(a)
    a(f"""
    s_cmp_ge_u32 s2, 256
    s_cbranch_scc1 K4_END
    s_load_dwordx4 s[4:7], s[0:1], 64
    s_load_dwordx2 s[14:15], s[0:1], 88    ; ws
    v_lshrrev_b32 v1, 6, v0
    v_and_b32 v0, 63, v0
    s_and_b32 s16, s2, 7
    s_lshl_b32 s16, s16, 2
    s_lshr_b32 s17, s2, 6
    s_add_u32 s16, s16, s17
    s_lshr_b32 s17, s2, 3
    s_and_b32 s17, s17, 7            ; nb
    v_readfirstlane_b32 s18, v1
    v_lshrrev_b32 v2, 4, v0          ; lane/16
    v_and_b32 v3, 15, v0             ; lane%16
    s_waitcnt lgkmcnt(0)
    """)
    stamp_init(a)
    NK = 14
    a("s_cmp_lt_u32 s18, 4")
    a("s_cbranch_scc1 K4_CONS")
    make_srd(a, 20, 14, 2048*3584, WS_HH)
    make_srd(a, 24, 4, 1792*1024)
    a(f"""
    s_sub_u32 s19, s18, 4
    s_movk_i32 s33, 3584
    v_mul_lo_u32 v4, v2, s33
    """)
    for e in range(4):
        a(f"v_add_u32 v5, {4*e}, v2")
        a(f"v_xor_b32 v5, v3, v5")
        a(f"v_lshl_add_u32 v{6+e}, v5, 4, v4")
        if e: a(f"v_add_u32 v{6+e}, {4*e*3584}, v{6+e}")
    a(f"""
    v_lshrrev_b32 v4, 3, v0
    v_and_b32 v5, 7, v0
    v_and_b32 v10, 1, v2
    v_lshlrev_b32 v10, 2, v10
    v_xor_b32 v5, v5, v10
    v_lshlrev_b32 v5, 4, v5
    v_lshl_add_u32 v10, v4, 10, v5
    s_mul_i32 s34, s16, {64*3584}
    s_mul_i32 s35, s19, {16*3584}
    s_add_u32 s34, s34, s35
    s_lshl_b32 s35, s19, 15          ; 4w*8*1024
    s_lshl_b32 s36, s17, 7
    s_add_u32 s35, s35, s36
    s_lshl_b32 s36, s19, 12          ; lds 4w*1024
    """)
    def dma(kk):
        st = (kk % 4) * K4_STAGE
        a(f"s_add_u32 s38, s34, {kk*256}")
        for e in range(4):
            a(f"s_add_u32 m0, s36, {st + e*1024}")
            a(f"s_add_u32 s40, s35, {kk*128*1024 + e*8192}")
            a(f"buffer_load_dwordx4 v{6+e}, s[20:23], s38 offen lds")
            a(f"s_add_u32 m0, s36, {st + 16384 + e*1024}")
            a(f"s_nop 0")
            a(f"buffer_load_dwordx4 v10, s[24:27], s40 offen lds")
    dma(0); dma(1); dma(2)
    for kk in range(NK):
        rem = min(2, NK-1-kk)
        a(f"s_waitcnt vmcnt({8*rem})")
        a("s_barrier")
        if kk + 3 < NK:
            dma(kk + 3)
    a("s_branch K4_FIN")
    a.label("K4_CONS")
    AA = 16
    AW = 32
    a(f"""
    v_and_b32 v11, 31, v0
    v_lshrrev_b32 v12, 5, v0         ; h
    s_lshr_b32 s40, s18, 1
    s_lshl_b32 s40, s40, 5
    v_add_u32 v13, s40, v11          ; row
    v_and_b32 v14, 15, v13
    v_lshlrev_b32 v13, 8, v13        ; row*256
    """)
    for ss in range(8):
        a(f"v_add_u32 v15, {2*ss}, v12")
        a(f"v_xor_b32 v15, v15, v14")
        a(f"v_lshl_add_u32 v{AA+ss}, v15, 4, v13")
        a(f"v_add_u32 v{AA+8+ss}, 65536, v{AA+ss}")
    a(f"""
    v_lshrrev_b32 v14, 2, v3         ; li/4
    v_lshl_add_u32 v15, v12, 3, v14  ; krow
    v_and_b32 v13, 1, v2
    v_lshlrev_b32 v13, 5, v13
    v_and_b32 v34, 3, v3
    v_lshl_add_u32 v13, v34, 3, v13
    s_and_b32 s40, s18, 1
    s_lshl_b32 s40, s40, 6
    v_add_u32 v13, s40, v13          ; colbyte
    v_lshrrev_b32 v14, 1, v14
    v_lshlrev_b32 v14, 6, v14
    v_xor_b32 v13, v13, v14
    v_lshl_add_u32 v13, v15, 7, v13
    v_add_u32 v{AW}, 16384, v13
    v_add_u32 v{AW+1}, {16384+65536}, v13
    """)
    HR = 36
    a(f"""
    s_lshl_b32 s40, s16, 6
    s_lshr_b32 s41, s18, 1
    s_lshl_b32 s41, s41, 5
    s_add_u32 s40, s40, s41
    v_add_u32 v34, s40, v11
    v_lshlrev_b32 v34, 10, v34
    v_lshl_add_u32 v34, v12, 3, v34
    s_lshl_b32 s40, s17, 7
    s_and_b32 s41, s18, 1
    s_lshl_b32 s41, s41, 6
    s_add_u32 s40, s40, s41
    v_add_u32 v34, s40, v34
    v_add_u32 v35, {WS_H}, v34
    """)
    ACC = 48
    FRG = 64
    def reads(st, ss):
        f = FRG + 8*ss
        hi = st >= 2
        so = (st % 2) * K4_STAGE
        a(f"ds_read_b64_tr_b16 v[{f}:{f+1}], v{AW+hi} offset:{so+ss*2048}")
        a(f"ds_read_b64_tr_b16 v[{f+2}:{f+3}], v{AW+hi} offset:{so+ss*2048+512}")
        a(f"ds_read_b128 v[{f+4}:{f+7}], v{AA+8*hi+ss} offset:{so}")
    for kk in range(NK):
        st = kk % 4
        stamp(a)
        a("s_barrier")
        if kk == 11:
            for g in range(4):
                a(f"global_load_dwordx2 v[{HR+2*g}:{HR+2*g+1}], v35, s[14:15] offset:{16*g}")
        for ss in range(4):
            reads(st, ss)
        for ss in range(8):
            if ss + 4 < 8:
                reads(st, ss+4)
                a("s_waitcnt lgkmcnt(12)")
            else:
                a(f"s_waitcnt lgkmcnt({3*(7-ss)})")
            f = FRG + 8*ss
            c = "0" if (kk == 0 and ss == 0) else f"v[{ACC}:{ACC+15}]"
            a(f"v_mfma_f32_32x32x16_bf16 v[{ACC}:{ACC+15}], v[{f}:{f+3}], v[{f+4}:{f+7}], {c}")
    stamp(a)
    a("s_mov_b32 s33, 0xffff0000")
    a("s_waitcnt vmcnt(0)")
    a("s_nop 10")
    for i in range(8):
        a(f"v_cvt_pk_bf16_f32 v64, v{ACC+2*i}, v{ACC+2*i+1}")
        a(f"v_lshlrev_b32 v65, 16, v64")
        a(f"v_and_b32 v66, s33, v64")
        a(f"v_lshlrev_b32 v67, 16, v{HR+i}")
        a(f"v_and_b32 v68, s33, v{HR+i}")
        a(f"v_add_f32 v65, v65, v67")
        a(f"v_add_f32 v66, v66, v68")
        a(f"v_cvt_pk_bf16_f32 v{72+i}, v65, v66")
    for g in range(4):
        a(f"global_store_dwordx2 v34, v[{72+2*g}:{73+2*g}], s[6:7] offset:{16*g}")
    stamp(a)
    stamp_flush(a)
    a.label("K4_FIN")
    tl_end(a, 3)
    a.label("K4_END")
    a("s_endpgm")
    return name, 128, 256, 512, K4_LDS
```

```python
import math, struct

class Asm:
    def __init__(self):
        self.lines = []
    def __call__(self, s):
        for l in s.strip("\n").split("\n"):
            self.lines.append("    " + l.strip())
    def label(self, l):
        self.lines.append(l + ":")
    def comment(self, c):
        self.lines.append("    ; " + c)
    def text(self):
        return "\n".join(self.lines) + "\n"

def f32bits(x):
    return struct.unpack("<I", struct.pack("<f", x))[0]

def vr(a, n=None):
    if n is None or n == 1:
        return f"v{a}"
    return f"v[{a}:{a+n-1}]"

def sr(a, n=2):
    return f"s[{a}:{a+n-1}]"

WS_Q   = 0x0000000
WS_KF  = 0x0200000
WS_VF  = 0x0210000
WS_WOT = 0x0220000
WS_H   = 0x0300000
WS_HN  = 0x0500000
WS_HH  = 0x0700000

QSCALE = 0.25 * math.log2(math.e)

def kernel_header(a, name):
    a.lines.append(f".globl {name}")
    a.lines.append(".p2align 8")
    a.lines.append(f".type {name},@function")
    a.lines.append(f"{name}:")

def kernel_desc(name, nvgpr, nsgpr=102):
    if STAMPS_ON(): nvgpr = 256 if "k3" not in name else 168
    acc = (nvgpr + 3) // 4 * 4
    return f""".amdhsa_kernel {name}
  .amdhsa_next_free_vgpr {nvgpr}
  .amdhsa_next_free_sgpr {nsgpr}
  .amdhsa_accum_offset {acc}
  .amdhsa_group_segment_fixed_size 0
  .amdhsa_kernarg_size 96
  .amdhsa_user_sgpr_count 2
  .amdhsa_user_sgpr_kernarg_segment_ptr 1
  .amdhsa_system_sgpr_workgroup_id_x 1
  .amdhsa_float_denorm_mode_32 3
.end_amdhsa_kernel
"""

def make_srd(a, d, base, nbytes, add=0):
    if add:
        a(f"s_add_u32 s{d}, s{base}, {add}")
        a(f"s_addc_u32 s{d+1}, s{base+1}, 0")
    else:
        a(f"s_mov_b32 s{d}, s{base}")
        a(f"s_mov_b32 s{d+1}, s{base+1}")
    a(f"s_mov_b32 s{d+2}, {nbytes}")
    a(f"s_mov_b32 s{d+3}, 0x00020000")

import os
STAMPS = os.environ.get("STAMPS", "") != ""
_stamp_state = {"n": 0}
def stamp_init(a):
    if not STAMPS: return
    _stamp_state["n"] = 0
    a("s_load_dwordx2 s[92:93], s[0:1], 80")
    a("s_memtime s[90:91]")
    a("s_memrealtime s[96:97]")
    a("s_waitcnt lgkmcnt(0)")
def stamp(a, wavesreg="s18"):
    if not STAMPS: return
    n = _stamp_state["n"]; _stamp_state["n"] += 1
    assert n < 32
    a("s_memtime s[94:95]")
    a("s_waitcnt lgkmcnt(0)")
    a(f"s_sub_u32 s{50+n}, s94, s90")
def stamp_flush(a, wavesreg="s18", SV=160):
    if not STAMPS: return
    n = _stamp_state["n"]
    lab = f"STAMP_SKIP_{len(a.lines)}"
    a(f"s_or_b32 s95, s2, {wavesreg}")
    a(f"s_cmp_lg_u32 s95, 0")
    a(f"s_cbranch_scc1 {lab}")
    a(f"v_mov_b32 v{SV+1}, 0")
    for i in range(n):
        a(f"v_mov_b32 v{SV}, s{50+i}")
        a(f"global_store_dword v{SV+1}, v{SV}, s[92:93] offset:{4*i}")
        a("s_nop 1")
    a.label(lab)
def STAMPS_ON():
    return STAMPS

TL = os.environ.get("TIMELINE", "") != ""
WS_TL = 0x2000000
def tl_start(a):
    if not TL: return
    a("s_memrealtime s[86:87]")
def tl_end(a, kidx, wavesreg="s18"):
    if not TL: return
    n = len(a.lines)
    a("s_memrealtime s[88:89]")
    a("s_waitcnt lgkmcnt(0)")
    a("s_mov_b64 exec, 1")
    a(f"s_lshl_b32 s84, s2, 4")
    a(f"s_add_u32 s84, s84, {wavesreg}")
    a(f"s_lshl_b32 s84, s84, 3")
    a(f"s_add_u32 s84, s84, {WS_TL + kidx*65536}")
    a("v_mov_b32 v0, s84")
    a("v_mov_b32 v2, s86")
    a("v_mov_b32 v3, s88")
    a("global_store_dwordx2 v0, v[2:3], s[14:15]")
```

```python
from common import *

K2_LDS_K = 0
K2_LDS_V = 65536
K2_LDS_O = 131072
K2_LDS_ST = 131072 + 8320
K2_LDS_PART = K2_LDS_ST + 2048
K2_LDS_CNT = K2_LDS_PART + 16384
K2_LDS = K2_LDS_CNT + 16
BIAS = 40.0

Q = 4; NM = 16; S0 = 32; S1 = 48; P = 64; O = 72; KB = (88, 92); VB = (96, 104)
AK = 112; AV = 113; AK2 = 14; AV2 = 15; P2 = 120
WOP = 128

def gen_k2(a):
    name = "k2_attn_kernel"
    kernel_header(a, name)
    tl_start(a)
    a(f"""
    s_cmp_ge_u32 s2, 256
    s_cbranch_scc1 K2_END
    s_load_dwordx2 s[4:5], s[0:1], 0       ; x
    s_load_dwordx4 s[8:11], s[0:1], 48
    s_load_dwordx2 s[12:13], s[0:1], 64    ; w_down
    s_load_dwordx2 s[14:15], s[0:1], 88    ; ws
    v_lshrrev_b32 v1, 6, v0
    v_and_b32 v0, 63, v0
    s_and_b32 s16, s2, 7
    s_lshl_b32 s16, s16, 5
    s_lshr_b32 s17, s2, 3
    s_add_u32 s16, s16, s17
    s_lshl_b32 s16, s16, 3           ; row0
    v_readfirstlane_b32 s18, v1
    s_mov_b32 s40, 0
    s_waitcnt lgkmcnt(0)
    """)
    stamp_init(a)
    make_srd(a, 20, 14, 131072, WS_KF)
    a(f"""
    v_and_b32 v2, 7, v0              ; r
    v_bfe_u32 v3, v0, 3, 2           ; hl
    v_lshrrev_b32 v8, 5, v0          ; l/32
    v_add_u32 v9, s16, v2
    v_lshlrev_b32 v9, 10, v9
    v_lshl_add_u32 v9, v3, 5, v9
    v_lshl_add_u32 v9, v8, 4, v9
    s_lshl_b32 s19, s18, 7           ; 4w*32
    v_add_u32 v9, s19, v9
    global_load_dwordx4 v[{Q}:{Q+3}], v9, s[14:15]
    v_lshlrev_b32 v{AK}, 4, v0       ; lane*16
    """)
    a("s_lshl_b32 s48, s18, 11          ; 2w*1024")
    def kvdma(idx):
        c = idx // 4; kv = (idx // 2) % 2; i = idx % 2
        off = c*16*1024 + i*1024 + kv*65536
        a(f"s_add_u32 s29, s48, {off}")
        a(f"s_mov_b32 m0, s29")
        a(f"s_nop 0")
        a(f"buffer_load_dwordx4 v{AK}, s[20:23], s29 offen lds")
    for idx in range(4):
        kvdma(idx)
    a(f"""
    v_and_b32 v10, 15, v0
    v_lshlrev_b32 v10, 4, v10
    v_lshl_add_u32 v{AV}, v8, 8, v10
    v_add_u32 v{AV}, {K2_LDS_V}, v{AV}
    v_and_b32 v10, 27, v0            ; l%32 with bit2 cleared : 16 and 20 -> 16
    v_and_b32 v10, 31, v10
    v_cmp_eq_u32 vcc, 16, v10
    v_mov_b32 v11, 0x3f803f80
    s_mov_b32 s42, 0xffff
    s_mov_b32 s43, 0xffff
    s_nop 1
    v_cndmask_b32 v11, 0, v11, vcc
    """)
    for i in range(16):
        a(f"v_mov_b32 v{VB[0]+i}, v11")
    a(f"""
    v_mov_b32 v9, {K2_LDS_CNT}
    v_mov_b32 v10, 0
    ds_write_b32 v9, v10
    s_waitcnt vmcnt(0) lgkmcnt(0)
    s_barrier
    ds_read_b128 v[{KB[0]}:{KB[0]+3}], v{AK}
    s_waitcnt lgkmcnt(0)
    v_mfma_f32_32x32x16_bf16 v[{S0}:{S0+15}], v[{KB[0]}:{KB[0]+3}], v[{Q}:{Q+3}], 0
    s_nop 15
    v_max3_f32 v10, v{S0}, v{S0+1}, v{S0+2}
    """)
    for i in range(3, 15, 2):
        a(f"v_max3_f32 v10, v10, v{S0+i}, v{S0+i+1}")
    a(f"""
    v_max_f32 v10, v10, v{S0+15}
    v_mov_b32 v11, v10
    s_nop 1
    v_permlane32_swap_b32 v10, v11
    s_mov_b32 s44, {f32bits(BIAS)}
    v_max_f32 v10, v10, v11
    v_add_f32 v10, s44, v10
    v_sub_f32 v10, 0, v10
    """)
    stamp(a)
    a("""
    s_cmp_lt_u32 s18, 4
    s_cbranch_scc1 K2_NOPRIO
    s_setprio 1
    K2_NOPRIO:
    """)
    a.label("K2_RESTART")
    for i in range(16):
        a(f"v_mov_b32 v{NM+i}, v10")
    a(f"""
    ds_read_b128 v[{KB[0]}:{KB[0]+3}], v{AK}
    ds_read_b128 v[{KB[1]}:{KB[1]+3}], v{AK} offset:1024
    s_mov_b64 exec, s[42:43]
    ds_read_b128 v[{VB[0]}:{VB[0]+3}], v{AV}
    ds_read_b128 v[{VB[0]+4}:{VB[0]+7}], v{AV} offset:512
    s_mov_b64 exec, -1
    s_lshl_b32 s28, s18, 16          ; 4w*16*1024
    s_add_u32 s28, s28, {WS_WOT + 4096}
    v_add_u32 v114, s28, v{AK}
    v_add_u32 v115, 16384, v114
    v_add_u32 v116, 32768, v114
    v_add_u32 v117, 49152, v114
    s_lshl_b32 s28, s2, 3
    s_add_u32 s28, s28, s18
    s_min_u32 s28, s28, 1791
    s_lshl_b32 s28, s28, 10
    v_add_u32 v{AK2}, s28, v{AK}
    s_waitcnt lgkmcnt(0)
    v_mfma_f32_32x32x16_bf16 v[{S0}:{S0+15}], v[{KB[0]}:{KB[0]+3}], v[{Q}:{Q+3}], v[{NM}:{NM+15}]
    s_nop 7
    """)
    NT = 64
    for t in range(NT):
        S = S0 if t % 2 == 0 else S1
        Sn = S1 if t % 2 == 0 else S0
        Kn = KB[(t+1) % 2]; Knn = KB[t % 2]
        Vc = VB[t % 2]; Vn = VB[(t+1) % 2]
        Pc = P if t % 2 == 0 else P2
        Pp = P2 if t % 2 == 0 else P
        E = lambda x, y: [a(f"v_exp_f32 v{S+i}, v{S+i}") for i in range(x, y)]
        C = lambda x, y: [a(f"v_cvt_pk_bf16_f32 v{Pc+i}, v{S+2*i}, v{S+2*i+1}") for i in range(x, y)]
        if t == 14:
            a(f"""
            s_cmp_lg_u32 s40, 0
            s_cbranch_scc1 K2_SKIPBAR
            s_waitcnt vmcnt(0)
            s_barrier
            K2_SKIPBAR:
            """)
        if t + 1 < NT:
            a(f"v_mfma_f32_32x32x16_bf16 v[{Sn}:{Sn+15}], v[{Kn}:{Kn+3}], v[{Q}:{Q+3}], v[{NM}:{NM+15}]")
        if t + 2 < NT:
            a(f"ds_read_b128 v[{Knn}:{Knn+3}], v{AK} offset:{(t+2)*1024}")
        E(0, 5)
        if t > 0:
            a(f"v_mfma_f32_32x32x16_bf16 v[{O}:{O+15}], v[{Vn+4}:{Vn+7}], v[{Pp+4}:{Pp+7}], v[{O}:{O+15}]")
        if t + 1 < NT:
            a(f"s_mov_b64 exec, s[42:43]")
            a(f"ds_read_b128 v[{Vn}:{Vn+3}], v{AV} offset:{(t+1)*1024}")
            a(f"ds_read_b128 v[{Vn+4}:{Vn+7}], v{AV} offset:{(t+1)*1024+512}")
            a(f"s_mov_b64 exec, -1")
        E(5, 8); C(0, 4); E(8, 10)
        c = "0" if t == 0 else f"v[{O}:{O+15}]"
        a(f"v_mfma_f32_32x32x16_bf16 v[{O}:{O+15}], v[{Vc}:{Vc+3}], v[{Pc}:{Pc+3}], {c}")
        E(10, 13)
        if t < 12:
            kvdma(4 + t)
        if 16 <= t < 19:
            a(f"global_load_dwordx4 v[128:131], v{AK2}, s[{8+2*(t-16)}:{9+2*(t-16)}]")
        if 24 <= t < 56:
            j = t - 24; ks = j // 4; tt = j % 4
            r = WOP + (ks*4+tt)*4
            a(f"global_load_dwordx4 v[{r}:{r+3}], v{114+tt}, s[14:15] offset:{ks*1024-4096}")
        E(13, 16); C(4, 8)
        a("s_waitcnt lgkmcnt(0)")
    a("s_nop 0")
    a(f"v_mfma_f32_32x32x16_bf16 v[{O}:{O+15}], v[{VB[1]+4}:{VB[1]+7}], v[{P2+4}:{P2+7}], v[{O}:{O+15}]")
    stamp(a)
    a(f"""
    s_mov_b32 s45, {f32bits(4096.0)}
    s_nop 15
    v_cmp_ngt_f32 vcc, s45, v{O+8}       ; !(4096 > l)
    s_cmp_lg_u32 s40, 0
    s_cbranch_scc1 K2_OK
    s_cbranch_vccz K2_OK
    """)
    a(f"""
    s_mov_b32 s40, 1
    v_mov_b32 v10, 0xff800000
    v_mov_b32 v11, v{AK}
    s_mov_b32 s46, 0
    K2_MAXLOOP:
    ds_read_b128 v[{KB[0]}:{KB[0]+3}], v11
    s_waitcnt lgkmcnt(0)
    v_mfma_f32_32x32x16_bf16 v[{S0}:{S0+15}], v[{KB[0]}:{KB[0]+3}], v[{Q}:{Q+3}], 0
    s_nop 15
    """)
    for i in range(0, 16, 2):
        a(f"v_max3_f32 v10, v10, v{S0+i}, v{S0+i+1}")
    a(f"""
    v_add_u32 v11, 1024, v11
    s_add_u32 s46, s46, 1
    s_cmp_lt_u32 s46, 64
    s_cbranch_scc1 K2_MAXLOOP
    v_mov_b32 v11, v10
    s_nop 1
    v_permlane32_swap_b32 v10, v11
    s_nop 0
    v_max_f32 v10, v10, v11
    v_sub_f32 v10, 0, v10
    s_branch K2_RESTART
    K2_OK:
    """)
    a(f"""
    v_lshrrev_b32 v12, 4, v0             ; l/16
    v_rcp_f32 v10, v{O+8}
    s_movk_i32 s29, 1040
    v_mul_lo_u32 v11, v2, s29            ; row*1040
    v_lshl_add_u32 v11, v3, 5, v11       ; + hl*32
    v_lshl_add_u32 v11, v8, 3, v11       ; + 4h'*2
    v_add_u32 v11, s19, v11              ; + 4w*32
    v_add_u32 v11, {K2_LDS_O}, v11
    """)
    for i in range(8):
        a(f"v_mul_f32 v{O+i}, v{O+i}, v10")
    for i in range(4):
        a(f"v_cvt_pk_bf16_f32 v{O+i}, v{O+2*i}, v{O+2*i+1}")
    a(f"""
    ds_write_b64 v11, v[{O}:{O+1}]
    ds_write_b64 v11, v[{O+2}:{O+3}] offset:16
    v_mul_lo_u32 v11, v2, s29
    v_lshl_add_u32 v11, v12, 4, v11      ; (l%8)*1040 + (l/16)*16
    v_add_u32 v11, {K2_LDS_O}, v11
    v_lshl_add_u32 v1, v12, 3, v2        ; (l/16)*8 + l%8
    v_lshlrev_b32 v1, 4, v1
    v_add_u32 v1, {K2_LDS_PART}, v1
    v_add_u32 v13, s16, v2               ; row0 + l%8
    v_lshlrev_b32 v13, 10, v13
    v_lshl_add_u32 v13, v12, 3, v13
    v_add_u32 v13, s19, v13              ; x offset: + 64w*2   (s19 = w*128)
    s_cmp_lt_u32 s18, 4
    s_cbranch_scc1 K2_PHB
    s_setprio 0
    s_sub_u32 s49, s18, 4
    """)
    a(f"""
    s_lshl_b32 s28, s49, 17              ; 8(w-4)*16384
    s_add_u32 s28, s28, {WS_WOT + 4096 + 8192}
    s_lshl_b32 s47, s49, 12              ; 8(w-4)*512
    s_add_u32 s60, s14, s28
    s_addc_u32 s61, s15, 0
    """)
    for t8 in range(1, 8):
        a(f"s_add_u32 s{60+2*t8}, s60, {t8*16384}")
        a(f"s_addc_u32 s{61+2*t8}, s61, 0")
    BUF = (16, 48); ACA = 80; BFA = (120, 124)
    def batch(ks):
        for t8 in range(8):
            r = BUF[ks % 2] + 4*t8
            a(f"global_load_dwordx4 v[{r}:{r+3}], v{AK}, s[{60+2*t8}:{61+2*t8}] offset:{ks*1024-4096}")
    a("s_waitcnt lgkmcnt(0)")
    a(f"v_mov_b32 v9, {K2_LDS_CNT}")
    a("v_mov_b32 v10, 1")
    a("ds_add_u32 v9, v10")
    batch(0); batch(1)
    a(f"""
    K2_SPIN:
    ds_read_b32 v10, v9
    s_waitcnt lgkmcnt(0)
    v_readfirstlane_b32 s49, v10
    s_cmp_ge_u32 s49, 256
    s_cbranch_scc1 K2_GO
    s_sleep 2
    s_branch K2_SPIN
    K2_GO:
    ds_read_b128 v[{BFA[0]}:{BFA[0]+3}], v11 offset:512
    ds_read_b128 v[{BFA[1]}:{BFA[1]+3}], v11 offset:576
    """)
    for ks in range(8):
        b = BFA[ks % 2]
        a(f"s_waitcnt vmcnt({8 if ks < 7 else 0}) lgkmcnt({1 if ks < 7 else 0})")
        for t8 in range(8):
            f = BUF[ks % 2] + 4*t8
            c = "0" if ks == 0 else f"v[{ACA+4*t8}:{ACA+4*t8+3}]"
            a(f"v_mfma_f32_16x16x32_bf16 v[{ACA+4*t8}:{ACA+4*t8+3}], v[{f}:{f+3}], v[{b}:{b+3}], {c}")
        if ks + 2 < 8:
            a(f"ds_read_b128 v[{b}:{b+3}], v11 offset:{(8+ks+2)*64}")
            batch(ks + 2)
    a(f"""
    v_add_u32 v9, s47, v1
    s_mov_b32 s44, 0x00ff00ff
    s_mov_b32 s45, 0x00ff00ff
    s_nop 4
    s_mov_b64 exec, s[44:45]
    """)
    for t8 in range(8):
        a(f"ds_write_b128 v9, v[{ACA+4*t8}:{ACA+4*t8+3}] offset:{t8*512}")
    a("s_mov_b64 exec, -1")
    a.label("K2_PHB")
    a(f"""
    global_load_dwordx2 v[122:123], v13, s[4:5]
    global_load_dwordx2 v[124:125], v13, s[4:5] offset:32
    global_load_dwordx2 v[126:127], v13, s[4:5] offset:64
    global_load_dwordx2 v[118:119], v13, s[4:5] offset:96
    s_lshl_b32 s28, s18, 11              ; 4w*512
    v_add_u32 v9, s28, v1
    s_waitcnt lgkmcnt(0)
    s_barrier
    """)
    stamp(a)
    ACC = 72
    BF = (96, 100, 104, 108)
    for tt in range(4):
        a(f"ds_read_b128 v[{ACC+4*tt}:{ACC+4*tt+3}], v9 offset:{tt*512}")
    for j in range(4):
        a(f"ds_read_b128 v[{BF[j]}:{BF[j]+3}], v11 offset:{j*64}")
    a("s_waitcnt vmcnt(4)")
    for j in range(8):
        b = BF[j % 4]
        rem = min(3, 7 - j)
        a(f"s_waitcnt lgkmcnt({rem})")
        for tt in range(4):
            f = WOP + (j*4+tt)*4
            a(f"v_mfma_f32_16x16x32_bf16 v[{ACC+4*tt}:{ACC+4*tt+3}], v[{f}:{f+3}], v[{b}:{b+3}], v[{ACC+4*tt}:{ACC+4*tt+3}]")
        if j + 4 < 8:
            a(f"ds_read_b128 v[{b}:{b+3}], v11 offset:{(j+4)*64}")
    a("s_waitcnt vmcnt(0)")
    stamp(a)
    XR = [122, 124, 126, 118]
    H = 16
    a("s_mov_b32 s33, 0xffff0000")
    a("s_nop 7")
    for tt in range(4):
        for pr in range(2):
            A0 = ACC + 4*tt + 2*pr
            a(f"v_cvt_pk_bf16_f32 v40, v{A0}, v{A0+1}")
            a(f"v_lshlrev_b32 v41, 16, v40")
            a(f"v_and_b32 v42, s33, v40")
            a(f"v_lshlrev_b32 v43, 16, v{XR[tt]+pr}")
            a(f"v_and_b32 v44, s33, v{XR[tt]+pr}")
            a(f"v_add_f32 v41, v41, v43")
            a(f"v_add_f32 v42, v42, v44")
            a(f"v_cvt_pk_bf16_f32 v{32+2*tt+pr}, v41, v42")
            a(f"v_lshlrev_b32 v{H+4*tt+2*pr}, 16, v{32+2*tt+pr}")
            a(f"v_and_b32 v{H+4*tt+2*pr+1}, s33, v{32+2*tt+pr}")
    def tree16(op_first, dst, t):
        pass
    for i in range(4):
        a(f"v_pk_add_f32 v[{40+2*i}:{41+2*i}], v[{H+4*i}:{H+4*i+1}], v[{H+4*i+2}:{H+4*i+3}]")
    a("v_pk_add_f32 v[40:41], v[40:41], v[42:43]")
    a("v_pk_add_f32 v[44:45], v[44:45], v[46:47]")
    a("v_pk_add_f32 v[40:41], v[40:41], v[44:45]")
    a("v_add_f32 v40, v40, v41")
    def xgroups(r, t):
        a(f"v_mov_b32 v{t}, v{r}")
        a("s_nop 1")
        a(f"v_permlane16_swap_b32 v{r}, v{t}")
        a("s_nop 0")
        a(f"v_add_f32 v{r}, v{r}, v{t}")
        a(f"v_mov_b32 v{t}, v{r}")
        a("s_nop 1")
        a(f"v_permlane32_swap_b32 v{r}, v{t}")
        a("s_nop 0")
        a(f"v_add_f32 v{r}, v{r}, v{t}")
    xgroups(40, 41)
    a(f"""
    v_mul_f32 v42, {f32bits(1.0/64)}, v40    ; mu_w
    v_mov_b32 v43, v42
    """)
    for i in range(8):
        a(f"v_pk_add_f32 v[{48+2*i}:{49+2*i}], v[{H+2*i}:{H+2*i+1}], v[42:43] neg_lo:[0,1] neg_hi:[0,1]")
    a("v_pk_mul_f32 v[44:45], v[48:49], v[48:49]")
    a("v_pk_mul_f32 v[46:47], v[50:51], v[50:51]")
    for i in range(2, 8):
        d = 44 if i % 2 == 0 else 46
        a(f"v_pk_fma_f32 v[{d}:{d+1}], v[{48+2*i}:{49+2*i}], v[{48+2*i}:{49+2*i}], v[{d}:{d+1}]")
    a("v_pk_add_f32 v[44:45], v[44:45], v[46:47]")
    a("v_add_f32 v41, v44, v45")
    xgroups(41, 44)
    a(f"""
    v_lshlrev_b32 v46, 6, v2
    v_add_u32 v46, {K2_LDS_ST}, v46
    s_lshl_b32 s28, s18, 3
    v_add_u32 v45, s28, v46
    ds_write_b64 v45, v[40:41]
    s_mov_b32 s34, {f32bits(1.0/512)}
    s_mov_b32 s35, {f32bits(1e-5)}
    s_waitcnt lgkmcnt(0)
    s_barrier
    ds_read_b128 v[48:51], v46
    ds_read_b128 v[52:55], v46 offset:16
    ds_read_b128 v[56:59], v46 offset:32
    ds_read_b128 v[60:63], v46 offset:48
    s_waitcnt lgkmcnt(0)
    v_pk_add_f32 v[64:65], v[48:49], v[50:51]
    v_pk_add_f32 v[66:67], v[52:53], v[54:55]
    v_pk_add_f32 v[68:69], v[56:57], v[58:59]
    v_pk_add_f32 v[70:71], v[60:61], v[62:63]
    v_pk_add_f32 v[64:65], v[64:65], v[66:67]
    v_pk_add_f32 v[68:69], v[68:69], v[70:71]
    v_pk_add_f32 v[64:65], v[64:65], v[68:69]
    v_mul_f32 v40, s34, v64              ; mean
    v_mul_f32 v44, 64.0, v40
    """)
    for w in range(8):
        a(f"v_sub_f32 v{66+w}, v{48+2*w}, v44")
    a("v_mul_f32 v43, v66, v66")
    a("v_mul_f32 v45, v67, v67")
    for w in range(2, 8):
        d = 43 if w % 2 == 0 else 45
        a(f"v_fmac_f32 v{d}, v{66+w}, v{66+w}")
    a(f"""
    v_add_f32 v43, v43, v45
    v_fmac_f32 v65, {f32bits(1.0/64)}, v43    ; total M2
    v_mul_f32 v43, s34, v65              ; var
    v_cvt_pk_bf16_f32 v41, v40, v40
    v_lshlrev_b32 v41, 16, v41           ; m_b
    v_max_f32 v43, 0, v43
    v_cvt_pk_bf16_f32 v43, v43, v43
    v_lshlrev_b32 v43, 16, v43
    v_add_f32 v43, s35, v43
    v_cvt_pk_bf16_f32 v43, v43, v43
    v_lshlrev_b32 v43, 16, v43
    v_sqrt_f32 v43, v43
    s_nop 0
    v_cvt_pk_bf16_f32 v43, v43, v43
    v_lshlrev_b32 v43, 16, v43
    v_rcp_f32 v43, v43
    """)
    for i in range(16):
        a(f"v_sub_f32 v{H+i}, v{H+i}, v41")
    for i in range(16):
        a(f"v_mul_f32 v{H+i}, v{H+i}, v43")
    for i in range(8):
        a(f"v_cvt_pk_bf16_f32 v{48+i}, v{H+2*i}, v{H+2*i+1}")
    a(f"""
    s_mov_b32 s42, 0x00ff00ff
    s_mov_b32 s43, 0x00ff00ff
    v_add_u32 v14, {WS_H}, v13
    v_add_u32 v15, {WS_HN}, v13
    s_mov_b64 exec, s[42:43]
    """)
    for tt in range(4):
        a(f"global_store_dwordx2 v14, v[{32+2*tt}:{33+2*tt}], s[14:15] offset:{32*tt}")
        a(f"global_store_dwordx2 v15, v[{48+2*tt}:{49+2*tt}], s[14:15] offset:{32*tt}")
    stamp(a)
    tl_end(a, 1)
    stamp_flush(a)
    a.label("K2_END")
    a("s_endpgm")
    return name, 256, 256, 512, K2_LDS
```

```python
from common import *

K3_STAGE = 24576
K3_NST = 6
K3_LDS = K3_NST * K3_STAGE
GELU_C = -2.0 * math.sqrt(2.0/math.pi) * math.log2(math.e)
OUT_STRIDE = 272

def gen_k3(a):
    name = "k3_ffn_up_kernel"
    kernel_header(a, name)
    tl_start(a)
    a(f"""
    s_cmp_ge_u32 s2, 224
    s_cbranch_scc1 K3_END
    s_load_dwordx4 s[4:7], s[0:1], 48
    s_load_dwordx2 s[14:15], s[0:1], 88    ; ws
    v_lshrrev_b32 v1, 6, v0
    v_and_b32 v0, 63, v0
    s_and_b32 s19, s2, 7             ; xcd
    s_lshr_b32 s17, s2, 3            ; idx 0..27
    s_mul_i32 s16, s17, 37
    s_lshr_b32 s16, s16, 8           ; idx/7 (0..3)
    s_mul_i32 s34, s16, 7
    s_sub_u32 s17, s17, s34          ; idx%7
    s_lshr_b32 s34, s19, 1
    s_lshl_b32 s34, s34, 2
    s_add_u32 s16, s16, s34
    s_and_b32 s19, s19, 1
    s_mul_i32 s19, s19, 7
    s_add_u32 s17, s17, s19          ; fb = 7*(xcd%2) + idx%7
    v_readfirstlane_b32 s18, v1
    v_lshrrev_b32 v2, 4, v0          ; lane/16
    v_and_b32 v3, 15, v0             ; lane%16
    s_movk_i32 s33, 3584
    s_waitcnt lgkmcnt(0)
    """)
    stamp_init(a)
    NK = 16
    a("s_cmp_lt_u32 s18, 8")
    a("s_cbranch_scc1 K3_CONS")
    make_srd(a, 20, 14, 2048*1024, WS_HN)
    make_srd(a, 24, 4, 512*3584)
    make_srd(a, 28, 6, 512*3584)
    a(f"""
    s_sub_u32 s19, s18, 8
    v_lshrrev_b32 v4, 2, v0          ; lane/4
    v_and_b32 v5, 3, v0              ; lane%4
    v_xor_b32 v6, v5, v2
    v_lshlrev_b32 v6, 4, v6
    v_lshl_add_u32 v6, v4, 10, v6    ; A voff
    v_lshlrev_b32 v8, 2, v2
    v_xor_b32 v8, v3, v8
    v_lshlrev_b32 v8, 4, v8
    v_mul_lo_u32 v9, v2, s33
    v_add_u32 v8, v8, v9             ; G voff
    s_lshl_b32 s34, s16, 17
    s_lshl_b32 s35, s19, 15          ; 2lw*16*1024
    s_add_u32 s34, s34, s35
    s_mul_i32 s35, s19, {8*3584}     ; 2lw*4*3584
    s_lshl_b32 s36, s17, 8
    s_add_u32 s35, s35, s36
    s_lshl_b32 s36, s19, 11
    """)
    def dma(kk):
        st = (kk % K3_NST) * K3_STAGE
        for e in range(2):
            a(f"s_add_u32 m0, s36, {st + e*1024}")
            a(f"s_add_u32 s38, s34, {kk*64 + e*16384}")
            a(f"buffer_load_dwordx4 v6, s[20:23], s38 offen lds")
            a(f"s_add_u32 m0, s36, {st + 8192 + e*1024}")
            a(f"s_add_u32 s39, s35, {kk*32*3584 + e*4*3584}")
            a(f"buffer_load_dwordx4 v8, s[24:27], s39 offen lds")
            a(f"s_add_u32 m0, s36, {st + 16384 + e*1024}")
            a(f"s_nop 0")
            a(f"buffer_load_dwordx4 v8, s[28:31], s39 offen lds")
    dma(0); dma(1); dma(2)
    issued = 3
    for kk in range(NK):
        need = min(kk + 1, NK - 1)
        a(f"s_waitcnt vmcnt({6*(issued-1-need)})")
        a("s_barrier")
        n = 0
        while issued < NK and issued <= kk + K3_NST - 1 and n < 2:
            dma(issued); issued += 1; n += 1
    a("s_barrier")
    a("s_barrier")
    a("s_branch K3_STORE")
    a.label("K3_CONS")
    AA = 16
    AW = 22
    a(f"""
    v_and_b32 v10, 31, v0
    v_lshrrev_b32 v11, 5, v0         ; h
    s_lshr_b32 s40, s18, 2
    s_lshl_b32 s40, s40, 6
    v_add_u32 v12, s40, v10
    v_lshlrev_b32 v12, 6, v12        ; row*64
    v_bfe_u32 v13, v10, 2, 2         ; (row>>2)&3
    """)
    for ss in range(2):
        a(f"v_add_u32 v14, {2*ss}, v11")
        a(f"v_xor_b32 v14, v14, v13")
        a(f"v_lshl_add_u32 v{AA+ss}, v14, 4, v12")
        a(f"v_add_u32 v{AA+2+ss}, {2*K3_STAGE}, v{AA+ss}")
        a(f"v_add_u32 v{AA+4+ss}, {4*K3_STAGE}, v{AA+ss}")
    a(f"""
    v_lshrrev_b32 v14, 2, v3         ; li/4
    v_lshl_add_u32 v15, v11, 3, v14  ; krow
    v_and_b32 v10, 1, v2             ; G%2
    v_lshlrev_b32 v10, 5, v10
    v_and_b32 v12, 3, v3
    v_lshl_add_u32 v10, v12, 3, v10
    s_and_b32 s40, s18, 3
    s_lshl_b32 s40, s40, 6
    v_add_u32 v10, s40, v10          ; colbyte
    v_lshlrev_b32 v14, 6, v14        ; (li/4)<<2 <<4
    v_xor_b32 v10, v10, v14
    v_lshl_add_u32 v10, v15, 8, v10
    v_add_u32 v{AW}, 8192, v10
    v_add_u32 v{AW+1}, {8192+2*K3_STAGE}, v10
    v_add_u32 v{AW+2}, {8192+4*K3_STAGE}, v10
    """)
    ACG = 64; ACU = 96
    FR = (32, 48)
    def reads(kk, ss, fs):
        st = kk % K3_NST; g = st // 2; so = (st % 2) * K3_STAGE
        f = FR[fs]
        a(f"ds_read_b64_tr_b16 v[{f}:{f+1}], v{AW+g} offset:{so+ss*4096}")
        a(f"ds_read_b64_tr_b16 v[{f+2}:{f+3}], v{AW+g} offset:{so+ss*4096+1024}")
        a(f"ds_read_b128 v[{f+8}:{f+11}], v{AA+2*g+ss} offset:{so}")
        a(f"ds_read_b64_tr_b16 v[{f+4}:{f+5}], v{AW+g} offset:{so+8192+ss*4096}")
        a(f"ds_read_b64_tr_b16 v[{f+6}:{f+7}], v{AW+g} offset:{so+8192+ss*4096+1024}")
        a(f"ds_read_b128 v[{f+12}:{f+15}], v{AA+2*g+ss} offset:{so+2048}")
    def mfmas(fs, first):
        f = FR[fs]
        for mt in range(2):
            for (acc, wf) in ((ACG, f), (ACU, f+4)):
                A = acc + 16*mt
                c = "0" if first else f"v[{A}:{A+15}]"
                a(f"v_mfma_f32_32x32x16_bf16 v[{A}:{A+15}], v[{wf}:{wf+3}], v[{f+8+4*mt}:{f+11+4*mt}], {c}")
    for kk in range(NK):
        if kk % 2 == 0: stamp(a)
        a("s_barrier")
        if kk == 0:
            reads(0, 0, 0)
        reads(kk, 1, 1)
        a("s_waitcnt lgkmcnt(6)")
        mfmas(0, kk == 0)
        if kk + 1 < NK:
            reads(kk+1, 0, 0)
            a("s_waitcnt lgkmcnt(6)")
        else:
            a("s_waitcnt lgkmcnt(0)")
        mfmas(1, False)
    stamp(a)
    a(f"""
    v_and_b32 v10, 31, v0
    s_lshr_b32 s41, s18, 2
    s_lshl_b32 s41, s41, 6
    v_add_u32 v10, s41, v10
    s_movk_i32 s42, {OUT_STRIDE}
    v_mul_lo_u32 v10, v10, s42
    v_lshl_add_u32 v10, v11, 3, v10
    s_and_b32 s41, s18, 3
    s_lshl_b32 s41, s41, 6
    v_add_u32 v10, s41, v10
    v_mov_b32 v12, {f32bits(GELU_C)}
    v_mov_b32 v13, {f32bits(GELU_C)}
    v_mov_b32 v14, {f32bits(GELU_C*0.044715)}
    v_mov_b32 v15, {f32bits(GELU_C*0.044715)}
    v_mov_b32 v16, 1.0
    v_mov_b32 v17, 1.0
    s_barrier
    """)
    T = 32
    for mt in range(2):
        G = ACG + 16*mt; U = ACU + 16*mt
        P = lambda b, r: f"v[{b+2*r}:{b+2*r+1}]"
        for r in range(8):
            a(f"v_pk_mul_f32 {P(T,r)}, {P(G,r)}, {P(G,r)}")
        for r in range(8):
            a(f"v_pk_fma_f32 {P(T,r)}, {P(T,r)}, v[14:15], v[12:13]")
        for r in range(8):
            a(f"v_pk_mul_f32 {P(T,r)}, {P(T,r)}, {P(G,r)}")
        for r in range(16):
            a(f"v_exp_f32 v{T+r}, v{T+r}")
        for r in range(8):
            a(f"v_pk_mul_f32 {P(G,r)}, {P(G,r)}, {P(U,r)}")
        for r in range(8):
            a(f"v_pk_add_f32 {P(T,r)}, {P(T,r)}, v[16:17]")
        for r in range(16):
            a(f"v_rcp_f32 v{T+r}, v{T+r}")
        a("s_nop 0")
        for r in range(8):
            a(f"v_pk_mul_f32 {P(T,r)}, {P(T,r)}, {P(G,r)}")
        for i in range(8):
            a(f"v_cvt_pk_bf16_f32 v{T+16+i}, v{T+2*i}, v{T+2*i+1}")
        for g in range(4):
            a(f"ds_write_b64 v10, v[{T+16+2*g}:{T+17+2*g}] offset:{mt*32*OUT_STRIDE + 16*g}")
    a("s_waitcnt lgkmcnt(0)")
    a("s_barrier")
    a.label("K3_STORE")
    a(f"""
    s_lshl_b32 s40, s18, 2           ; 4w
    v_add_u32 v10, s40, v2
    s_movk_i32 s42, {OUT_STRIDE}
    v_mul_lo_u32 v12, v10, s42
    v_lshl_add_u32 v12, v3, 4, v12
    s_lshl_b32 s40, s16, 7
    v_add_u32 v10, s40, v10
    v_mul_lo_u32 v10, v10, s33
    v_lshl_add_u32 v10, v3, 4, v10
    s_lshl_b32 s40, s17, 8
    s_add_u32 s40, s40, {WS_HH}
    v_add_u32 v10, s40, v10
    v_add_u32 v13, {48*3584}, v10
    v_add_u32 v14, {96*3584}, v10
    ds_read_b128 v[32:35], v12
    ds_read_b128 v[36:39], v12 offset:{48*OUT_STRIDE}
    s_cmp_ge_u32 s18, 8
    s_cbranch_scc1 K3_ST2
    ds_read_b128 v[40:43], v12 offset:{96*OUT_STRIDE}
    s_waitcnt lgkmcnt(0)
    global_store_dwordx4 v14, v[40:43], s[14:15]
    K3_ST2:
    s_waitcnt lgkmcnt(0)
    global_store_dwordx4 v10, v[32:35], s[14:15]
    global_store_dwordx4 v13, v[36:39], s[14:15]
    """)
    stamp(a)
    stamp_flush(a)
    tl_end(a, 2)
    a.label("K3_END")
    a("s_endpgm")
    return name, 128, 224, 768, K3_LDS
```
